```python
import torch

def _softmax(x, axis=-1):
    return torch.softmax(x, dim=axis)
def _gelu(x):
    return torch.nn.functional.gelu(x, approximate="tanh")
def _silu(x):
    return torch.nn.functional.silu(x)
def _sigmoid(x):
    return torch.sigmoid(x)
def _layernorm(x, axis=-1, eps=1e-5):
    m = x.mean(dim=axis, keepdim=True)
    v = x.var(dim=axis, keepdim=True, unbiased=False)
    return (x - m) / torch.sqrt(v + eps)
def _scatter_add(tgt, idx, src, axis=0):
    return tgt.clone().index_add_(axis, idx, src)
def _segment_sum(src, seg, n):
    out = torch.zeros((n,) + src.shape[1:], dtype=src.dtype)
    return out.index_add_(0, seg, src)
def _pad(x, pw):
    flat = tuple(v for pair in reversed(pw) for v in pair)
    return torch.nn.functional.pad(x, flat)

kernel_name = 'concat_heads__mha_block_cached__mha_block_cached__near_ridge'

def setup_inputs():

    _w = (lambda a: (lambda t: t.to(torch.bfloat16) if t.is_floating_point() else t)(torch.as_tensor(a)))
    def _A_setup():
        B, Sq, D = 8, 240, 512
        H, Sk, Dh = 32, 512, 128
        return {
            "x": _w((lambda *s: torch.randn(*s, dtype=torch.bfloat16) * 0.8)(B, Sq, D)),
            "k_cache": _w((lambda *s: torch.randn(*s, dtype=torch.bfloat16) * 0.8)(B, H, Sk, Dh)),
            "v_cache": _w((lambda *s: torch.randn(*s, dtype=torch.bfloat16) * 0.05)(B, H, Sk, Dh)),
            "wq": _w((lambda *s: torch.randn(*s, dtype=torch.bfloat16) * 0.8)(D, H * Dh) * (D ** -0.5)),
            "wo": _w((lambda *s: torch.randn(*s, dtype=torch.bfloat16) * 0.05)(H * Dh, D) * ((H * Dh) ** -0.5)),
        }
    _A_in = _A_setup()

    def _B_setup():
        B, Sq, D = 8, 240, 512
        H, Sk, Dh = 32, 512, 128
        return {
            "x": _w((lambda *s: torch.randn(*s, dtype=torch.bfloat16) * 0.8)(B, Sq, D)),
            "k_cache": _w((lambda *s: torch.randn(*s, dtype=torch.bfloat16) * 0.8)(B, H, Sk, Dh)),
            "v_cache": _w((lambda *s: torch.randn(*s, dtype=torch.bfloat16) * 0.05)(B, H, Sk, Dh)),
            "wq": _w((lambda *s: torch.randn(*s, dtype=torch.bfloat16) * 0.8)(D, H * Dh) * (D ** -0.5)),
            "wo": _w((lambda *s: torch.randn(*s, dtype=torch.bfloat16) * 0.05)(H * Dh, D) * ((H * Dh) ** -0.5)),
        }
    _B_in = _B_setup()

    return {
        "A_x": _A_in["x"],
        "A_k_cache": _A_in["k_cache"],
        "A_v_cache": _A_in["v_cache"],
        "A_wq": _A_in["wq"],
        "A_wo": _A_in["wo"],
        "B_x": _B_in["x"],
        "B_k_cache": _B_in["k_cache"],
        "B_v_cache": _B_in["v_cache"],
        "B_wq": _B_in["wq"],
        "B_wo": _B_in["wo"],
    }

def reference(A_x, A_k_cache, A_v_cache, A_wq, A_wo, B_x, B_k_cache, B_v_cache, B_wq, B_wo):
    def _A_ref(x, k_cache, v_cache, wq, wo):
        B, Sq, D = x.shape
        H, Dh = 32, 128
        q = (lambda x, *d: x.permute(*d))((x @ wq).reshape(B, Sq, H, Dh), 0, 2, 1, 3)
        scores = torch.einsum("bhqd,bhkd->bhqk", q, k_cache) * (Dh ** -0.5)
        p = _softmax(scores, axis=-1)
        o = torch.einsum("bhqk,bhkd->bhqd", p, v_cache)
        return (lambda x, *d: x.permute(*d))(o, 0, 2, 1, 3).reshape(B, Sq, H * Dh) @ wo

    def _B_ref(x, k_cache, v_cache, wq, wo):
        B, Sq, D = x.shape
        H, Dh = 32, 128
        q = (lambda x, *d: x.permute(*d))((x @ wq).reshape(B, Sq, H, Dh), 0, 2, 1, 3)
        scores = torch.einsum("bhqd,bhkd->bhqk", q, k_cache) * (Dh ** -0.5)
        p = _softmax(scores, axis=-1)
        o = torch.einsum("bhqk,bhkd->bhqd", p, v_cache)
        return (lambda x, *d: x.permute(*d))(o, 0, 2, 1, 3).reshape(B, Sq, H * Dh) @ wo

    a = _A_ref(A_x, A_k_cache, A_v_cache, A_wq, A_wo)
    b = _B_ref(B_x, B_k_cache, B_v_cache, B_wq, B_wo)
    return torch.concatenate([a, b], axis=-1)
```

```python
from collections import defaultdict


class Reg:
    __slots__ = ("c", "i", "n")

    def __init__(s, c, i, n=1):
        s.c, s.i, s.n = c, i, n

    def __str__(s):
        if s.n == 1:
            return f"{s.c}{s.i}"
        return f"{s.c}[{s.i}:{s.i + s.n - 1}]"

    __repr__ = __str__

    def regs(s):
        return [f"{s.c}{k}" for k in range(s.i, s.i + s.n)]

    def __getitem__(s, k):
        assert 0 <= k < s.n
        return Reg(s.c, s.i + k, 1)

    def sub(s, k, n):
        assert 0 <= k and k + n <= s.n
        return Reg(s.c, s.i + k, n)


def v(i, n=1):
    assert 0 <= i and i + n <= 256, (i, n)
    return Reg("v", i, n)


def a(i, n=1):
    assert 0 <= i and i + n <= 256, (i, n)
    return Reg("a", i, n)


def s(i, n=1):
    assert 0 <= i and i + n <= 102, (i, n)
    return Reg("s", i, n)


def regs_of(x):
    if isinstance(x, Reg):
        return x.regs()
    if isinstance(x, str):
        if x in ("m0", "exec", "scc"):
            return [x]
        if x == "vcc":
            return ["vcc"]
        return []
    return []


class Ins:
    __slots__ = ("txt", "kind", "rd", "wr", "cost", "pin", "lo", "after", "tag", "need",
                 "lgkm0", "w_vm", "w_lg", "nop", "first", "stream", "idx", "srcC", "comment", "force_keep")

    def __init__(s, txt, kind, rd=(), wr=(), cost=4, pin=None, lo=None, tag=None, need=None,
                 lgkm0=False, first=False, srcC=()):
        s.txt, s.kind = txt, kind
        s.rd, s.wr = list(rd), list(wr)
        s.cost = cost
        s.pin = pin
        s.lo = lo
        s.after = []
        s.tag = tag
        s.need = need
        s.lgkm0 = lgkm0
        s.w_vm = None
        s.w_lg = None
        s.nop = 0
        s.first = first
        s.stream = None
        s.srcC = list(srcC)
        s.comment = None
        s.force_keep = False

    def __repr__(s):
        return f"<{s.kind}:{s.txt}>"


def _flat(xs):
    out = []
    for x in xs:
        out += regs_of(x)
    return out


def mfma(D, A, B, C):
    ctxt = str(C)
    rd = _flat([A, B]) + (regs_of(C) if isinstance(C, Reg) else [])
    return Ins(f"v_mfma_f32_16x16x32_bf16 {D}, {A}, {B}, {ctxt}", "mfma", rd, D.regs(), cost=8,
               srcC=(regs_of(C) if isinstance(C, Reg) else []))


TRANS = ("v_exp_f32", "v_rcp_f32", "v_log_f32", "v_rsq_f32", "v_sqrt_f32")


def valu(op, dst, *src, extra_rd=(), extra_wr=(), suffix=""):
    kind = "trans" if op in TRANS else "valu"
    txt = f"{op} {dst}, " + ", ".join(str(x) for x in src) + suffix
    rd = _flat(src) + list(extra_rd)
    wr = _flat([dst]) + list(extra_wr)
    if op.startswith("v_cndmask") and "vcc" not in rd and not any(isinstance(x, Reg) and x.c == "s" and x.n == 2 for x in src):
        rd.append("vcc")
    if op in ("v_swap_b32",) or op.startswith("v_permlane"):
        rd = _flat([dst]) + _flat(src)
        wr = _flat([dst]) + _flat(src)
    if op in ("v_fmac_f32",):
        rd += _flat([dst])
    i = Ins(txt, kind, rd + ["exec"], wr, cost=8 if kind == "trans" else 4)
    return i


def vcmp(op, dst, x, y):
    return Ins(f"{op} {dst}, {x}, {y}", "valu", _flat([x, y]) + ["exec"], _flat([dst]), cost=4)


def salu(op, dst, *src, scc_wr=None, scc_rd=False):
    txt = f"{op} {dst}" + "".join(f", {x}" for x in src)
    rd = _flat(src)
    wr = _flat([dst])
    if op.startswith("s_cmp"):
        rd = _flat([dst]) + rd
        wr = ["scc"]
    else:
        if scc_wr is None:
            scc_wr = op.split("_")[1] in ("add", "addc", "sub", "subb", "and", "or", "xor", "lshl", "lshr", "ashr", "andn2", "min", "max", "not", "bfe")
        if scc_wr:
            wr.append("scc")
    if scc_rd or op.startswith("s_cselect") or op.startswith("s_addc") or op.startswith("s_subb"):
        rd.append("scc")
    return Ins(txt, "salu", rd, wr, cost=4)


def ds_read(op, dst, addr, off=0, **kw):
    assert 0 <= off < 65536, off
    o = f" offset:{off}" if off else ""
    return Ins(f"{op} {dst}, {addr}{o}", "ds_rd", addr.regs() + ["exec"], dst.regs(), cost=4, first=True, **kw)


def ds_b128(dst, addr, off=0, **kw):
    return ds_read("ds_read_b128", dst, addr, off, **kw)


def ds_tr(dst, addr, off=0, **kw):
    return ds_read("ds_read_b64_tr_b16", dst, addr, off, **kw)


def ds_write(op, addr, data, off=0):
    o = f" offset:{off}" if off else ""
    return Ins(f"{op} {addr}, {data}{o}", "ds_wr", addr.regs() + data.regs() + ["exec"], [], cost=4)


def dma(voff, srd, soff, imm=0, nt=False, tag=None):
    assert 0 <= imm < 4096
    o = f" offset:{imm}" if imm else ""
    n = " nt" if nt else ""
    return Ins(f"buffer_load_dwordx4 {voff}, {srd}, {soff} offen{o}{n} lds", "dma",
               voff.regs() + srd.regs() + regs_of(soff) + ["m0", "exec"], [], cost=4, tag=tag)


def vload(dst, voff, srd, soff, imm=0, nt=False, tag=None, op=None):
    assert 0 <= imm < 4096
    op = op or {1: "buffer_load_dword", 2: "buffer_load_dwordx2", 4: "buffer_load_dwordx4"}[dst.n]
    o = f" offset:{imm}" if imm else ""
    n = " nt" if nt else ""
    return Ins(f"{op} {dst}, {voff}, {srd}, {soff} offen{o}{n}", "vld",
               voff.regs() + srd.regs() + regs_of(soff) + ["exec"], dst.regs(), cost=4, tag=tag)


def vstore(data, voff, srd, soff, imm=0, nt=False, tag=None, mods=""):
    assert 0 <= imm < 4096
    op = {1: "buffer_store_dword", 2: "buffer_store_dwordx2", 4: "buffer_store_dwordx4"}[data.n]
    o = f" offset:{imm}" if imm else ""
    n = " nt" if nt else ""
    return Ins(f"{op} {data}, {voff}, {srd}, {soff} offen{o}{n}{mods}", "vst",
               voff.regs() + srd.regs() + regs_of(soff) + data.regs() + ["exec"], [], cost=4, tag=tag)


def waitvm(need):
    return Ins("", "waitvm", cost=4, need=need)


def waitlg(*rs):
    return Ins("", "waitlg", _flat(rs), [], cost=4)


def barrier(need=None, lgkm0=True):
    return Ins("s_barrier", "barrier", cost=4, need=need, lgkm0=lgkm0)


def raw(txt, kind="salu", rd=(), wr=(), cost=4):
    return Ins(txt, kind, _flat(rd), _flat(wr), cost=cost)


def label(name):
    return Ins(f"{name}:", "label", cost=0)


def sload(dst, base, off):
    return Ins(f"s_load_dword{'x%d' % dst.n if dst.n > 1 else ''} {dst}, {base}, {off}", "smem",
               base.regs(), dst.regs(), cost=4)


def build_deps(logical):
    idx = {id(x): k for k, x in enumerate(logical)}
    lastw = {}
    readers = defaultdict(list)
    preds = [set() for _ in logical]
    for k, ins in enumerate(logical):
        for r in ins.rd:
            if r in lastw:
                preds[k].add(lastw[r])
        for r in ins.wr:
            if r in lastw:
                preds[k].add(lastw[r])
            for q in readers[r]:
                if q != k:
                    preds[k].add(q)
        for r in ins.rd:
            readers[r].append(k)
        for r in ins.wr:
            lastw[r] = k
            readers[r] = []
        for p in ins.after:
            assert id(p) in idx, ("explicit dep outside region", ins, p)
            preds[k].add(idx[id(p)])
    return preds


class HazState:
    def __init__(s):
        s.n = 0
        s.mf_w = {}
        s.mf_c = {}
        s.va_w = {}
        s.tr_w = {}
        s.va_sw = {}
        s.m0_w = -100
        s.exec_w = -100
        s.st_d = {}
        s.mf_D = {}

    def required(s, ins):
        need = 0

        def req(pos, dist):
            nonlocal need
            if pos is None:
                return
            d = s.n - pos - 1
            if d < dist:
                need = max(need, dist - d)

        k = ins.kind
        if k == "mfma":
            C = tuple(ins.srcC)
            for r in ins.rd:
                if r in s.va_w:
                    req(s.va_w[r], 2)
                if r in s.mf_w:
                    if r in C and s.mf_D.get(r) == C:
                        if r in ins.rd[:len(ins.rd) - len(C)]:
                            req(s.mf_w[r], 8)
                    elif r in C:
                        req(s.mf_w[r], 6)
                    else:
                        req(s.mf_w[r], 8)
            req(s.exec_w, 4)
        elif k in ("valu", "trans"):
            for r in ins.rd:
                if r in s.mf_w:
                    req(s.mf_w[r], 8)
                if r in s.tr_w and k == "valu":
                    req(s.tr_w[r], 1)
                if r in s.tr_w and k == "trans":
                    req(s.tr_w[r], 1)
                if r in s.va_sw:
                    req(s.va_sw[r], 2)
                if ins.txt.startswith("v_permlane") or "dpp" in ins.txt or "row_" in ins.txt:
                    if r in s.va_w:
                        req(s.va_w[r], 2)
                if ins.txt.startswith("v_readfirstlane") or ins.txt.startswith("v_readlane"):
                    if r in s.va_w:
                        req(s.va_w[r], 1)
            for r in ins.wr:
                if r in s.mf_w:
                    req(s.mf_w[r], 8)
                if r in s.mf_c:
                    req(s.mf_c[r], 3)
                if r in s.st_d:
                    req(s.st_d[r], 2)
        elif k in ("ds_rd", "ds_wr", "dma", "vld", "vst"):
            for r in ins.rd:
                if r in s.mf_w:
                    req(s.mf_w[r], 8)
                if r in s.va_sw and k in ("dma", "vld", "vst"):
                    req(s.va_sw[r], 5)
            for r in ins.wr:
                if r in s.mf_w:
                    req(s.mf_w[r], 8)
                if r in s.st_d:
                    req(s.st_d[r], 1)
            if k == "dma":
                req(s.m0_w, 1)
        elif k == "salu":
            for r in ins.rd:
                if r in s.va_sw:
                    req(s.va_sw[r], 1)
        return need

    def issue(s, ins, nops=0):
        s.n += nops
        k = ins.kind
        if k == "label":
            return
        if k == "mfma":
            D = tuple(ins.wr)
            for r in ins.wr:
                s.mf_w[r] = s.n
                s.mf_D[r] = D
                s.va_w.pop(r, None)
            for r in ins.srcC:
                s.mf_c[r] = s.n
        elif k in ("valu", "trans"):
            for r in ins.wr:
                if r.startswith("s") or r == "vcc":
                    s.va_sw[r] = s.n
                elif r == "exec":
                    s.exec_w = s.n
                else:
                    s.va_w[r] = s.n
                    s.mf_w.pop(r, None)
                    if k == "trans":
                        s.tr_w[r] = s.n
                    else:
                        s.tr_w.pop(r, None)
        elif k == "salu":
            for r in ins.wr:
                if r == "m0":
                    s.m0_w = s.n
                s.va_sw.pop(r, None)
        elif k == "vst":
            if len([r for r in ins.rd if r[0] in "va"]) >= 4:
                for r in ins.rd:
                    if r[0] in "va":
                        s.st_d[r] = s.n
        elif k in ("ds_rd", "vld"):
            for r in ins.wr:
                s.mf_w.pop(r, None)
                s.va_w.pop(r, None)
                s.tr_w.pop(r, None)
        s.n += 1


def schedule(logical, budget=8, streams=None, window=40, verbose=None, haz=None):
    preds = build_deps(logical)
    n = len(logical)
    done = [False] * n
    out = []
    mf = [k for k, x in enumerate(logical) if x.kind == "mfma"]
    pinned = defaultdict(list)
    floating = []
    for k, x in enumerate(logical):
        if x.kind == "mfma":
            continue
        if x.pin is not None:
            pinned[x.pin].append(k)
        else:
            floating.append(k)
    hz = haz or HazState()
    streams = streams or {}
    tot = defaultdict(int)
    for k in floating:
        tot[logical[k].stream] += logical[k].cost
    emitted = defaultdict(int)
    stats = dict(forced=0, over=0)

    def emit(k):
        ins = logical[k]
        assert not done[k]
        nn = hz.required(ins)
        hz.issue(ins, nn)
        done[k] = True
        out.append(ins)
        if ins.kind != "mfma" and ins.pin is None:
            emitted[ins.stream] += ins.cost

    def force(k, depth=0):
        for p in sorted(preds[k]):
            if not done[p]:
                if logical[p].kind == "mfma":
                    raise RuntimeError(f"forced pred is a later MFMA: {logical[k]} needs {logical[p]}")
                force(p, depth + 1)
                stats["forced"] += logical[p].cost
                emit(p)

    def ready(k):
        return all(done[p] for p in preds[k])

    fl_ptr = 0

    def pick(g, room, lagging_only=None):
        nonlocal fl_ptr
        while fl_ptr < len(floating) and done[floating[fl_ptr]]:
            fl_ptr += 1
        cnt = 0
        best = None
        j = fl_ptr
        while j < len(floating) and cnt < window:
            k = floating[j]
            j += 1
            if done[k]:
                continue
            cnt += 1
            x = logical[k]
            if x.lo is not None and x.lo > g:
                continue
            if lagging_only is not None and x.stream != lagging_only:
                continue
            if x.cost > room:
                continue
            if not ready(k):
                continue
            if hz.required(x) > 0:
                continue
            if room >= 8 and x.cost == 8:
                return k
            if best is None:
                best = k
                if room < 8:
                    return k
        return best

    def fill(g):
        used = 0
        pk = pinned.get(g, [])
        pk = [k for k in pk if logical[k].first] + [k for k in pk if not logical[k].first]
        for k in pk:
            if done[k]:
                continue
            force(k)
            emit(k)
            used += logical[k].cost
        if g < 0:
            return
        while used < budget:
            k = pick(g, budget - used)
            if k is None:
                break
            emit(k)
            used += logical[k].cost
        for name, (g0, g1) in streams.items():
            if g < g0:
                continue
            tgt = tot[name] * min(1.0, (g - g0 + 1) / (g1 - g0 + 1))
            while emitted[name] + 2 < tgt:
                k = pick(g, 8, lagging_only=name)
                if k is None:
                    break
                emit(k)
                used += logical[k].cost
        if used > budget:
            stats["over"] += used - budget

    fill(-1)
    for g, k in enumerate(mf):
        force(k)
        emit(k)
        fill(g)
    left = 0
    for k in range(n):
        if not done[k]:
            force(k)
            left += logical[k].cost
            emit(k)
    stats["left"] = left
    stats["nmf"] = len(mf)
    if verbose:
        tc = sum(x.cost for x in logical)
        print(f"  [sched {verbose}] mfma={len(mf)} instr={n} issue={tc} forced={stats['forced']} over={stats['over']} left={left}")
    pos = {id(x): i for i, x in enumerate(out)}
    for k in range(n):
        for p in preds[k]:
            assert pos[id(logical[p])] < pos[id(logical[k])]
    return out


def finalize(traces, name=""):
    for trace in traces:
        vmq = []
        lgq = []
        vm_count = 0
        for seg, env in trace:
            for ins in seg:
                k = ins.kind
                if k == "label":
                    continue
                touched = set(ins.rd) | set(ins.wr)
                wl = None
                if ins.lgkm0 and lgq:
                    wl = 0
                smem_hit = False
                for j, (rs, kd) in enumerate(lgq):
                    if rs & touched:
                        if kd == "smem":
                            smem_hit = True
                        c = len(lgq) - 1 - j
                        wl = c if wl is None else min(wl, c)
                if wl is not None and (smem_hit or any(kd == "smem" for _, kd in lgq)):
                    wl = 0
                if wl is not None:
                    wl = min(wl, 15)
                    ins.w_lg = wl if ins.w_lg is None else min(ins.w_lg, wl)
                wv = None
                for j, (tag, rs) in enumerate(vmq):
                    hit = bool(rs & touched)
                    if hit:
                        c = len(vmq) - 1 - j
                        wv = c if wv is None else min(wv, c)
                if ins.need is not None:
                    nd = ins.need(env)
                    if nd == "all":
                        if vmq:
                            wv = 0
                    else:
                        nd = set(nd)
                        for j, (tag, rs) in enumerate(vmq):
                            if tag in nd:
                                c = len(vmq) - 1 - j
                                wv = c if wv is None else min(wv, c)
                if wv is not None and wv <= 63:
                    ins.w_vm = wv if ins.w_vm is None else min(ins.w_vm, wv)
                if wl is not None:
                    lgq[:] = lgq[len(lgq) - wl:] if wl > 0 else []
                if wv is not None and wv <= 63:
                    vmq[:] = vmq[len(vmq) - wv:] if wv > 0 else []
                if k in ("ds_rd",):
                    lgq.append((set(ins.wr), k))
                elif k == "ds_wr":
                    lgq.append((set(), k))
                elif k == "smem":
                    lgq.append((set(ins.wr), k))
                elif k in ("dma", "vld", "vst"):
                    vmq.append((ins.tag(env) if ins.tag else None, set(ins.wr)))
                    if len(vmq) > 63:
                        vmq[:] = vmq[-63:]
    for trace in traces:
        hz = HazState()
        for seg, env in trace:
            for ins in seg:
                if ins.kind == "label":
                    continue
                has_wait = (ins.w_vm is not None) or (ins.w_lg is not None)
                if ins.kind in ("waitvm", "waitlg"):
                    continue
                if has_wait:
                    hz.n += 1
                base = ins.nop
                hz.n += base
                need = hz.required(ins)
                if need > 0:
                    ins.nop = base + need
                    hz.n += need
                hz.issue(ins)


def check_hazards(traces):
    bad = 0
    for trace in traces:
        hz = HazState()
        for seg, env in trace:
            for ins in seg:
                if ins.kind == "label":
                    continue
                has_wait = (ins.w_vm is not None) or (ins.w_lg is not None)
                if ins.kind in ("waitvm", "waitlg"):
                    continue
                if has_wait:
                    hz.n += 1
                hz.n += ins.nop
                if hz.required(ins) > 0:
                    bad += 1
                    print("HAZARD left:", ins)
                hz.issue(ins)
    return bad


def emit_text(seg):
    lines = []
    pv = pl = None

    def flush():
        nonlocal pv, pl
        w = []
        if pv is not None:
            w.append(f"vmcnt({pv})")
        if pl is not None:
            w.append(f"lgkmcnt({pl})")
        if w:
            lines.append("    s_waitcnt " + " ".join(w))
        pv = pl = None

    for ins in seg:
        if ins.kind == "label":
            flush()
            lines.append(ins.txt)
            continue
        if ins.w_vm is not None:
            pv = ins.w_vm if pv is None else min(pv, ins.w_vm)
        if ins.w_lg is not None:
            pl = ins.w_lg if pl is None else min(pl, ins.w_lg)
        if ins.kind in ("waitvm", "waitlg"):
            continue
        flush()
        nn = ins.nop
        while nn > 0:
            c = min(nn, 8)
            lines.append(f"    s_nop {c - 1}")
            nn -= c
        lines.append("    " + ins.txt + (f"    ; {ins.comment}" if ins.comment else ""))
    flush()
    return "\n".join(lines)


def seg_stats(seg):
    c = defaultdict(int)
    for ins in seg:
        c[ins.kind] += 1
        if ins.w_vm is not None or ins.w_lg is not None:
            c["WAIT"] += 1
        if ins.nop:
            c["NOP"] += 1
            c["NOPSTATES"] += ins.nop
    return dict(c)
```

```python
from asmlib import *

LOG2E_SCALE = 0x3E0293EE
import struct, math


def f32bits(x):
    return struct.unpack("<I", struct.pack("<f", x))[0]


QSCALE = f32bits(math.log2(math.e) / math.sqrt(128.0))

LK = 0
LV = 65536
LW = [49152, 81920]
LX = [131072, 98304]
LFLAG = 161792
LDS_BYTES = 163840

sX = s(4, 4)
sW = s(8, 4)
sK = s(12, 4)
sV = s(16, 4)
sO = s(20, 4)
sD = s(24, 4)
sWv = s(28)
sHd = s(29)
sM0 = [s(30), s(31)]
sSo = [s(32 + i) for i in range(4)]
sStep = s(36)
sSoB = [s(38 + i) for i in range(4)]
sCnt = s(42)
sBad = s(43)
sOs = [s(44 + i) for i in range(4)]
sKo = s(48)
sVo = s(49)
sKm = s(50)
sVm = s(51)
sQs = s(52)
sT = [s(54 + i) for i in range(30)]
sExecOdd = s(84, 2)
sOsz = s(86)
sCnt2 = s(87)
sValid = s(88)

vL = [v(0 + i) for i in range(4)]
vRi = [v(4 + i) for i in range(4)]
vKr = v(8)
vVr = [v(9), v(10)]
vXr = v(11)
vWr = [[v(12), v(13)], [v(14), v(15)]]
vDm = [v(16 + i) for i in range(4)]
vSt = v(20)
vKd = [v(21 + i) for i in range(4)]
vVd = [v(25), v(26)]
vTmp = [v(27 + i) for i in range(5)]
vKf = lambda b, ds: v(32 + b * 16 + ds * 4, 4)
VS = 64
VP = 192
vS = lambda par, qt, kt: v(VS + par * 64 + qt * 16 + kt * 4, 4)
vQa = lambda qt, dt: v(VS + qt * 32 + dt * 4, 4)
vP = lambda par, qt, ks: v(VP + par * 32 + qt * 8 + ks * 4, 4)
aO = lambda qt, dt: a(qt * 32 + dt * 4, 4)
aQ = lambda qt, ds: a(128 + qt * 16 + ds * 4, 4)
aX = lambda b, qt, ks: a(192 + b * 32 + qt * 8 + ks * 4, 4)


def setup(E):
    T = sT
    vtid = v(VP)
    t = [v(VP + 1 + i) for i in range(16)]
    E(valu("v_mov_b32", vtid, v(0)))
    E(salu("s_cmp_ge_u32", s(2), 256))
    E(raw("s_cbranch_scc1 K1_END", "branch", rd=["scc"]))
    E(sload(s(56, 4), s(0, 2), 0))
    E(sload(s(60, 4), s(0, 2), 16))
    E(sload(s(64, 2), s(0, 2), 40))
    E(sload(s(66, 2), s(0, 2), 48))
    E(sload(s(68, 2), s(0, 2), 56))
    E(sload(s(70, 2), s(0, 2), 64))
    E(sload(s(72, 2), s(0, 2), 96))
    sJ, sI, sBr, sSub, sB, sHp = s(74), s(75), s(76), s(77), s(78), s(79)
    E(salu("s_and_b32", sJ, s(2), 7))
    E(salu("s_lshr_b32", sI, s(2), 3))
    E(salu("s_lshr_b32", sBr, sJ, 2))
    E(salu("s_and_b32", sSub, sJ, 3))
    E(salu("s_and_b32", sB, sSub, 1))
    E(salu("s_lshl_b32", sB, sB, 2))
    E(salu("s_and_b32", s(80), sI, 3))
    E(salu("s_add_u32", sB, sB, s(80)))
    E(salu("s_lshr_b32", sHp, sSub, 1))
    E(salu("s_lshl_b32", sHp, sHp, 3))
    E(salu("s_lshr_b32", s(80), sI, 2))
    E(salu("s_add_u32", sHp, sHp, s(80)))
    lane = t[0]
    E(valu("v_lshrrev_b32", t[1], 6, vtid))
    E(valu("v_and_b32", lane, 63, vtid))
    E(raw(f"v_readfirstlane_b32 {sWv}, {t[1]}", "valu", rd=[t[1], "exec"], wr=[sWv]))
    E(salu("s_cmp_eq_u32", sBr, 0))
    E(salu("s_cselect_b32", sX[0], s(56), s(64)))
    E(salu("s_cselect_b32", sX[1], s(57), s(65)))
    E(salu("s_cselect_b32", sK[0], s(58), s(66)))
    E(salu("s_cselect_b32", sK[1], s(59), s(67)))
    E(salu("s_cselect_b32", sV[0], s(60), s(68)))
    E(salu("s_cselect_b32", sV[1], s(61), s(69)))
    E(salu("s_cselect_b32", sW[0], s(62), s(70)))
    E(salu("s_cselect_b32", sW[1], s(63), s(71)))
    E(salu("s_mul_i32", s(80), sB, 245760))
    E(salu("s_add_u32", sX[0], sX[0], s(80)))
    E(salu("s_addc_u32", sX[1], sX[1], 0))
    E(salu("s_mov_b32", sX[2], 245760))
    E(salu("s_mov_b32", sX[3], "0x20000"))
    E(salu("s_lshl_b32", s(80), sHp, 9))
    E(salu("s_add_u32", sW[0], sW[0], s(80)))
    E(salu("s_addc_u32", sW[1], sW[1], 0))
    E(salu("s_sub_u32", sW[2], 512 * 8192, s(80)))
    E(salu("s_mov_b32", sW[3], "0x20000"))
    E(salu("s_lshl_b32", s(80), sB, 5))
    E(salu("s_lshl_b32", s(81), sHp, 1))
    E(salu("s_add_u32", s(80), s(80), s(81)))
    E(salu("s_lshl_b32", s(80), s(80), 17))
    E(salu("s_add_u32", sK[0], sK[0], s(80)))
    E(salu("s_addc_u32", sK[1], sK[1], 0))
    E(salu("s_mov_b32", sK[2], 262144))
    E(salu("s_mov_b32", sK[3], "0x20000"))
    E(salu("s_add_u32", sV[0], sV[0], s(80)))
    E(salu("s_addc_u32", sV[1], sV[1], 0))
    E(salu("s_mov_b32", sV[2], 262144))
    E(salu("s_mov_b32", sV[3], "0x20000"))
    E(salu("s_mul_i32", s(80), sBr, 120))
    E(salu("s_mul_i32", s(81), sB, 15))
    E(salu("s_add_u32", s(80), s(80), s(81)))
    E(salu("s_lshl_b32", s(80), s(80), 17))
    E(salu("s_lshl_b32", s(81), sHp, 13))
    E(salu("s_add_u32", s(80), s(80), s(81)))
    E(salu("s_add_u32", sO[0], s(72), s(80)))
    E(salu("s_addc_u32", sO[1], s(73), 0))
    E(salu("s_sub_u32", sOsz, 15 * 131072, s(81)))
    E(salu("s_mov_b32", sO[2], sOsz))
    E(salu("s_mov_b32", sO[3], "0x20000"))
    E(salu("s_cmp_lt_u32", sWv, 2))
    for k in range(3):
        E(salu("s_cselect_b32", sD[k], sX[k], sW[k]))
    E(salu("s_mov_b32", sD[3], "0x20000"))
    E(salu("s_mul_i32", s(80), sWv, 14336))
    for st in range(2):
        E(salu("s_add_u32", s(81), s(80), LX[st]))
        E(salu("s_cmp_lt_u32", sWv, 2))
        E(salu("s_cselect_b32", sM0[st], s(81), LW[st]))
    E(salu("s_mul_i32", s(80), sWv, 14 * 8192))
    for gm in range(4):
        E(salu("s_add_u32", s(81), s(80), gm * 32768))
        E(salu("s_cmp_lt_u32", sWv, 2))
        E(salu("s_cselect_b32", sSoB[gm], s(81), (gm & 1) * 262144 + (gm >> 1) * 128))
    E(salu("s_mov_b32", s(81), 128))
    E(salu("s_cmp_lt_u32", sWv, 2))
    E(salu("s_cselect_b32", sStep, s(81), 524288))
    E(salu("s_mov_b32", sQs, hex(QSCALE)))
    E(salu("s_mov_b32", sExecOdd[0], "0xffff0000"))
    E(salu("s_mov_b32", sExecOdd[1], "0xffff0000"))
    E(salu("s_mov_b32", sBad, 0))

    l15, g, r, cc, a2, sw, x0, x1, row8, slot = t[2:12]
    E(valu("v_and_b32", l15, 15, lane))
    E(valu("v_lshrrev_b32", g, 4, lane))
    E(valu("v_lshrrev_b32", r, 2, lane))
    E(valu("v_and_b32", r, 3, r))
    E(valu("v_and_b32", cc, 3, lane))
    E(valu("v_sub_u32", sw, 0, r))
    E(valu("v_and_b32", sw, 3, sw))
    E(valu("v_xor_b32", sw, sw, g))
    E(valu("v_lshlrev_b32", sw, 4, sw))
    E(valu("v_lshlrev_b32", x0, 10, r))
    E(valu("v_lshlrev_b32", x1, 6, cc))
    E(valu("v_add_u32", x0, x0, x1))
    E(valu("v_add_u32", vKr, x0, sw))
    E(valu("v_lshrrev_b32", x0, 3, l15))
    E(valu("v_lshlrev_b32", x0, 10, x0))
    E(valu("v_and_b32", x1, 7, l15))
    E(valu("v_lshlrev_b32", x1, 6, x1))
    E(valu("v_add_u32", x0, x0, x1))
    E(valu("v_add_u32", x0, x0, sw))
    E(salu("s_lshl_b32", s(80), sWv, 13))
    E(salu("s_add_u32", s(80), s(80), LX[1]))
    E(valu("v_add_u32", vXr, s(80), x0))
    E(valu("v_lshlrev_b32", x0, 10, g))
    E(valu("v_lshlrev_b32", x1, 6, r))
    E(valu("v_add_u32", x0, x0, x1))
    E(valu("v_and_b32", x1, 1, cc))
    E(valu("v_lshlrev_b32", x1, 3, x1))
    E(valu("v_add_u32", x0, x0, x1))
    E(valu("v_and_b32", a2, 1, g))
    E(valu("v_lshlrev_b32", a2, 1, a2))
    E(valu("v_lshrrev_b32", x1, 1, cc))
    E(valu("v_xor_b32", x1, x1, a2))
    E(valu("v_lshlrev_b32", x1, 4, x1))
    E(valu("v_add_u32", x0, x0, x1))
    E(valu("v_add_u32", vVr[0], LV, x0))
    E(valu("v_xor_b32", vVr[1], 32, vVr[0]))
    E(valu("v_lshrrev_b32", x0, 1, r))
    E(valu("v_lshlrev_b32", x0, 2, x0))
    E(valu("v_and_b32", x1, 1, g))
    E(valu("v_add_u32", x0, x0, x1))
    E(valu("v_xor_b32", x0, x0, cc))
    E(valu("v_lshlrev_b32", x0, 4, x0))
    E(valu("v_and_b32", x1, 1, cc))
    E(valu("v_lshlrev_b32", x1, 3, x1))
    E(valu("v_add_u32", x0, x0, x1))
    E(valu("v_lshlrev_b32", x1, 10, g))
    E(valu("v_add_u32", x0, x0, x1))
    E(valu("v_lshlrev_b32", x1, 7, r))
    E(valu("v_add_u32", x0, x0, x1))
    E(valu("v_add_u32", vWr[0][0], LW[0], x0))
    E(valu("v_xor_b32", vWr[0][1], 8, vWr[0][0]))
    E(valu("v_xor_b32", vWr[1][0], 64, vWr[0][0]))
    E(valu("v_xor_b32", vWr[1][1], 72, vWr[0][0]))
    xa, xb = t[12], t[13]
    E(salu("s_cmp_lt_u32", sWv, 2))
    E(salu("s_cselect_b64", s(80, 2), -1, 0))
    for i in range(4):
        E(valu("v_lshrrev_b32", row8, 2, lane))
        E(valu("v_and_b32", row8, 7, row8))
        E(valu("v_lshrrev_b32", x0, 2, row8))
        E(valu("v_add_u32", x0, 2 * (i & 1), x0))
        E(valu("v_sub_u32", x0, 0, x0))
        E(valu("v_and_b32", x0, 3, x0))
        E(valu("v_xor_b32", x0, x0, cc))
        E(valu("v_lshlrev_b32", x0, 4, x0))
        E(valu("v_lshlrev_b32", x1, 10, row8))
        E(valu("v_add_u32", x0, x0, x1))
        E(valu("v_lshrrev_b32", x1, 5, lane))
        E(valu("v_lshlrev_b32", x1, 6, x1))
        E(valu("v_add_u32", x0, x0, x1))
        E(valu("v_add_u32", xa, i * 7168, x0))
        E(valu("v_lshrrev_b32", row8, 3, lane))
        E(valu("v_and_b32", slot, 7, lane))
        E(valu("v_lshrrev_b32", x0, 1, row8))
        E(valu("v_and_b32", x0, 1, x0))
        E(valu("v_lshlrev_b32", x0, 2, x0))
        E(valu("v_add_u32", x0, (i & 1), x0))
        E(valu("v_xor_b32", x0, x0, slot))
        E(valu("v_lshlrev_b32", x0, 4, x0))
        E(valu("v_lshlrev_b32", x1, 13, row8))
        E(valu("v_add_u32", x0, x0, x1))
        E(valu("v_add_u32", xb, i * 64512, x0))
        E(valu("v_cndmask_b32", vDm[i], xb, xa, s(80, 2)))
    E(valu("v_lshlrev_b32", x0, 8, r))
    E(valu("v_lshlrev_b32", x1, 6, g))
    E(valu("v_add_u32", x0, x0, x1))
    for i in range(4):
        E(valu("v_xor_b32", x1, (-i) & 3, cc))
        E(valu("v_lshlrev_b32", x1, 4, x1))
        E(valu("v_add_u32", vKd[i], x0, x1))
    for e in range(2):
        E(valu("v_xor_b32", x1, 2 * e, cc))
        E(valu("v_lshlrev_b32", x1, 4, x1))
        E(valu("v_add_u32", vVd[e], x0, x1))
    E(salu("s_lshl_b32", s(80), sWv, 19))
    E(valu("v_lshlrev_b32", x0, 4, lane))
    E(valu("v_add_u32", vSt, s(80), x0))


def reduce_g(E, x, tmp, op):
    E(valu("v_mov_b32", tmp, x))
    E(valu("v_permlane16_swap_b32", x, tmp))
    E(valu(op, x, x, tmp))
    E(valu("v_mov_b32", tmp, x))
    E(valu("v_permlane32_swap_b32", x, tmp))
    E(valu(op, x, x, tmp))


def q_convert(E, qt, tmp):
    for ds in range(4):
        T0, T1 = vQa(qt, 2 * ds), vQa(qt, 2 * ds + 1)
        for T in (T0, T1):
            for k in range(4):
                E(valu("v_mul_f32", T[k], sQs, T[k]))
        E(valu("v_cvt_pk_bf16_f32", tmp[0], T0[0], T0[1]))
        E(valu("v_cvt_pk_bf16_f32", tmp[1], T0[2], T0[3]))
        E(valu("v_cvt_pk_bf16_f32", tmp[2], T1[0], T1[1]))
        E(valu("v_cvt_pk_bf16_f32", tmp[3], T1[2], T1[3]))
        E(raw(f"s_mov_b64 exec, {sExecOdd}", "salu", rd=[sExecOdd], wr=["exec"]))
        E(valu("v_swap_b32", tmp[0], tmp[2]))
        E(valu("v_swap_b32", tmp[1], tmp[3]))
        E(raw("s_mov_b64 exec, -1", "salu", wr=["exec"]))
        for k in range(4):
            E(valu("v_accvgpr_write_b32", aQ(qt, ds)[k], tmp[k]))


def slow_path():
    segs = []

    def seg():
        x = []
        segs.append(x)
        return x

    negm = lambda qt: v(VP + 32 + qt * 4, 4)
    mx = [v(VP + 48 + i) for i in range(4)]
    tmp4 = v(VP + 52, 4)
    tmp8 = v(VP + 56, 8)

    s0 = seg()
    E = s0.append
    E(label("K1_SLOW"))
    E(waitvm(lambda env: "all"))
    E(salu("s_mov_b32", sO[2], sOsz))
    E(salu("s_mov_b32", sHd, 0))
    E(valu("v_and_b32", vKr, "0xffff7fff", vKr))
    for e in range(2):
        E(valu("v_and_b32", vVr[e], "0xffff7fff", vVr[e]))
    s1 = seg()
    E = s1.append
    E(label("K1_SLOW_HEAD"))
    for gm in range(4):
        E(salu("s_mov_b32", sSo[gm], sSoB[gm]))
    E(salu("s_lshl_b32", sT[0], sHd, 8))
    E(salu("s_cmp_lt_u32", sWv, 2))
    E(salu("s_cselect_b32", sT[0], 0, sT[0]))
    for gm in range(4):
        E(salu("s_add_u32", sSo[gm], sSo[gm], sT[0]))
    for k in range(128):
        E(valu("v_mov_b32", v(VS + k), 0))
    E(salu("s_mov_b32", sCnt, 8))
    q0 = seg()
    E = q0.append
    E(label("K1_SLOW_Q"))
    E(barrier())
    E(salu("s_cmp_eq_u32", sWv, 3))
    E(raw("s_cbranch_scc1 K1_SLOW_Q1", "branch", rd=["scc"]))
    q1 = seg()
    E = q1.append
    for gm in range(4):
        E(salu("s_add_u32", "m0", sM0[0], gm * 4096))
        for i in range(4):
            E(dma(vDm[i], sD, sSo[gm], imm=i * 1024))
        E(salu("s_add_u32", sSo[gm], sSo[gm], sStep))
    q2 = seg()
    E = q2.append
    E(label("K1_SLOW_Q1"))
    E(barrier(need=lambda env: "all"))
    for qt in range(4):
        for ks in range(2):
            E(ds_b128(aX(0, qt, ks), vXr, 32768 + qt * 2048 + ks * 512))
    for dt in range(8):
        half, dsp, t = dt >> 2, (dt >> 1) & 1, dt & 1
        for ks in range(2):
            for u in range(2):
                E(ds_tr(vKf(0, ks).sub(2 * u, 2), vWr[dsp][t], half * 8192 + ks * 4096 + u * 512))
        for qt in range(4):
            for ks in range(2):
                E(mfma(vQa(qt, dt), vKf(0, ks), aX(0, qt, ks), vQa(qt, dt)))
    E(salu("s_sub_u32", sCnt, sCnt, 1))
    E(salu("s_cmp_lg_u32", sCnt, 0))
    E(raw("s_cbranch_scc1 K1_SLOW_Q", "branch", rd=["scc"]))
    c0 = seg()
    E = c0.append
    for qt in range(4):
        q_convert(E, qt, tmp4)
    for qt in range(4):
        E(valu("v_mov_b32", mx[qt], "0xff800000"))
    E(salu("s_lshl_b32", sKo, sHd, 17))
    E(salu("s_lshl_b32", sT[0], sWv, 12))
    E(salu("s_add_u32", sKo, sKo, sT[0]))
    E(salu("s_mov_b32", sVo, sKo))
    E(salu("s_mov_b32", sCnt, 8))
    p1 = seg()
    E = p1.append
    E(label("K1_SLOW_P1"))
    E(barrier())
    E(salu("s_lshl_b32", sT[0], sWv, 12))
    E(salu("s_add_u32", "m0", sT[0], LK))
    for i in range(4):
        E(dma(vKd[i], sK, sKo, imm=i * 1024))
    E(salu("s_add_u32", sKo, sKo, 16384))
    E(barrier(need=lambda env: "all"))
    for kt in range(4):
        for ds in range(4):
            E(ds_b128(vKf(0, ds), vKr, kt * 4096 + ds * 256))
        for qt in range(4):
            for ds in range(4):
                E(mfma(vS(0, qt, kt), vKf(0, ds), aQ(qt, ds), vS(0, qt, kt) if ds else 0))
    for qt in range(4):
        for kt in range(4):
            for k in range(4):
                E(valu("v_max_f32", mx[qt], mx[qt], vS(0, qt, kt)[k]))
    E(salu("s_sub_u32", sCnt, sCnt, 1))
    E(salu("s_cmp_lg_u32", sCnt, 0))
    E(raw("s_cbranch_scc1 K1_SLOW_P1", "branch", rd=["scc"]))
    c1 = seg()
    E = c1.append
    for qt in range(4):
        reduce_g(E, mx[qt], tmp4[0], "v_max_f32")
        for k in range(4):
            E(valu("v_sub_f32", negm(qt)[k], 0, mx[qt]))
        E(valu("v_mov_b32", vL[qt], 0))
    for k in range(128):
        E(valu("v_accvgpr_write_b32", a(k), 0))
    E(salu("s_mov_b32", sKo, sVo))
    E(salu("s_mov_b32", sCnt, 8))
    p2 = seg()
    E = p2.append
    E(label("K1_SLOW_P2"))
    E(barrier())
    E(salu("s_lshl_b32", sT[0], sWv, 12))
    E(salu("s_add_u32", "m0", sT[0], LK))
    for i in range(4):
        E(dma(vKd[i], sK, sKo, imm=i * 1024))
    E(salu("s_add_u32", "m0", sT[0], LV))
    for i in range(4):
        E(dma(vVd[i & 1], sV, sKo, imm=i * 1024))
    E(salu("s_add_u32", sKo, sKo, 16384))
    E(barrier(need=lambda env: "all"))
    for kt in range(4):
        for ds in range(4):
            E(ds_b128(vKf(0, ds), vKr, kt * 4096 + ds * 256))
        for qt in range(4):
            for ds in range(4):
                E(mfma(vS(0, qt, kt), vKf(0, ds), aQ(qt, ds), vS(0, qt, kt) if ds else negm(qt)))
    for qt in range(4):
        for kt in range(4):
            S = vS(0, qt, kt)
            for k in range(4):
                E(valu("v_exp_f32", S[k], S[k]))
            for k in range(4):
                E(valu("v_add_f32", vL[qt], vL[qt], S[k]))
            Pd = vP(0, qt, kt >> 1)
            E(valu("v_cvt_pk_bf16_f32", Pd[2 * (kt & 1)], S[0], S[1]))
            E(valu("v_cvt_pk_bf16_f32", Pd[2 * (kt & 1) + 1], S[2], S[3]))
    for dt in range(8):
        for ks in range(2):
            for u in range(2):
                E(ds_tr(vKf(1, ks).sub(2 * u, 2), vVr[dt & 1], (dt >> 1) * 256 + ks * 8192 + u * 4096))
        for qt in range(4):
            for ks in range(2):
                E(mfma(aO(qt, dt), vKf(1, ks), vP(0, qt, ks), aO(qt, dt)))
    E(salu("s_sub_u32", sCnt, sCnt, 1))
    E(salu("s_cmp_lg_u32", sCnt, 0))
    E(raw("s_cbranch_scc1 K1_SLOW_P2", "branch", rd=["scc"]))
    e0 = seg()
    E = e0.append
    E(salu("s_lshl_b32", sT[0], sHd, 12))
    for qt in range(4):
        E(salu("s_add_u32", sOs[qt], sT[0], qt * 131072))
    for qt in range(4):
        reduce_g(E, vL[qt], tmp4[0], "v_add_f32")
        E(valu("v_rcp_f32", vRi[qt], vL[qt]))
        for st in range(4):
            for h in range(2):
                for k in range(4):
                    E(valu("v_accvgpr_read_b32", tmp8[4 * h + k], aO(qt, 2 * st + h)[k]))
            for k in range(8):
                E(valu("v_mul_f32", tmp8[k], vRi[qt], tmp8[k]))
            for k in range(4):
                E(valu("v_cvt_pk_bf16_f32", tmp4[k], tmp8[2 * k], tmp8[2 * k + 1]))
            E(vstore(tmp4, vSt, sO, sOs[qt], imm=st * 1024))
    E(salu("s_add_u32", sHd, sHd, 1))
    E(salu("s_cmp_lt_u32", sHd, 2))
    E(raw("s_cbranch_scc1 K1_SLOW_HEAD", "branch", rd=["scc"]))
    E(raw("s_endpgm", "end"))

    def trace(dma_wave):
        t = [(s0, {})]
        for hd in range(2):
            t.append((s1, {}))
            for it in range(8):
                t.append((q0, {}))
                if dma_wave:
                    t.append((q1, {}))
                t.append((q2, {}))
            t.append((c0, {}))
            t += [(p1, {})] * 8
            t.append((c1, {}))
            t += [(p2, {})] * 8
            t.append((e0, {}))
        return t

    return segs, [trace(True), trace(False)]
```

```python
from asmlib import *

NAME = "outproj_kernel"


def build(opt):
    nt_o = opt.get("k2_nt_o", False)
    nt_w = opt.get("k2_nt_w", False)
    sWO = s(4, 4)
    sO = s(8, 4)
    sOUT = s(12, 4)
    sWv = s(16)
    sM0 = s(17)
    sCo = s(18)
    sCw = s(19)
    sCnt = s(20)
    sT = [s(24 + i) for i in range(12)]
    sQ2 = s(36)
    vAcc = lambda qt, nt: v(0 + (qt * 4 + nt) * 4, 4)
    vOb = lambda b, qt, st: v(32 + b * 32 + (qt * 4 + st) * 4, 4)
    vWf = lambda b, st: v(160 + b * 16 + st * 4, 4)
    vOa = [v(208), v(209)]
    vWd = [v(210 + i) for i in range(4)]
    vWr = [v(214 + i) for i in range(4)]
    vSt = v(218)
    vT = [v(220 + i) for i in range(24)]
    vTid = v(250)

    pro = []
    E = pro.append
    E(valu("v_mov_b32", vTid, v(0)))
    E(salu("s_cmp_ge_u32", s(2), 240))
    E(raw("s_cbranch_scc1 K2_END", "branch", rd=["scc"]))
    E(sload(s(24, 2), s(0, 2), 32))
    E(sload(s(26, 2), s(0, 2), 72))
    E(sload(s(28, 2), s(0, 2), 80))
    E(sload(s(30, 2), s(0, 2), 96))
    sJ, sI, sBr, sTt, sMt, sN8 = s(40), s(41), s(42), s(43), s(44), s(45)
    E(salu("s_and_b32", sJ, s(2), 7))
    E(salu("s_lshr_b32", sI, s(2), 3))
    E(salu("s_lshr_b32", sBr, sJ, 2))
    E(salu("s_and_b32", sTt, sJ, 3))
    E(salu("s_mul_i32", sTt, sTt, 30))
    E(salu("s_add_u32", sTt, sTt, sI))
    E(salu("s_lshr_b32", sMt, sTt, 3))
    E(salu("s_and_b32", sN8, sTt, 7))
    lane = vT[0]
    E(valu("v_lshrrev_b32", vT[1], 6, vTid))
    E(valu("v_and_b32", lane, 63, vTid))
    E(raw(f"v_readfirstlane_b32 {sWv}, {vT[1]}", "valu", rd=[vT[1], "exec"], wr=[sWv]))
    E(salu("s_cmp_eq_u32", sBr, 0))
    E(salu("s_cselect_b32", sWO[0], s(24), s(26)))
    E(salu("s_cselect_b32", sWO[1], s(25), s(27)))
    E(salu("s_lshl_b32", s(46), sN8, 7))
    E(salu("s_add_u32", sWO[0], sWO[0], s(46)))
    E(salu("s_addc_u32", sWO[1], sWO[1], 0))
    E(salu("s_sub_u32", sWO[2], 4096 * 1024, s(46)))
    E(salu("s_mov_b32", sWO[3], "0x20000"))
    E(salu("s_mul_i32", s(47), sBr, 120))
    E(salu("s_lshl_b32", s(48), sMt, 3))
    E(salu("s_add_u32", s(47), s(47), s(48)))
    E(salu("s_lshl_b32", s(48), sWv, 1))
    E(salu("s_add_u32", s(47), s(47), s(48)))
    E(salu("s_lshl_b32", s(47), s(47), 17))
    E(salu("s_add_u32", sO[0], s(30), s(47)))
    E(salu("s_addc_u32", sO[1], s(31), 0))
    E(salu("s_mov_b32", sO[2], 2 * 131072))
    E(salu("s_mov_b32", sO[3], "0x20000"))
    E(salu("s_lshl_b32", s(47), sBr, 10))
    E(salu("s_lshl_b32", s(48), sN8, 7))
    E(salu("s_add_u32", s(47), s(47), s(48)))
    E(salu("s_lshl_b32", s(48), sMt, 18))
    E(salu("s_add_u32", s(47), s(47), s(48)))
    E(salu("s_add_u32", sOUT[0], s(28), s(47)))
    E(salu("s_addc_u32", sOUT[1], s(29), 0))
    E(salu("s_sub_u32", sOUT[2], 8 * 240 * 2048, s(47)))
    E(salu("s_mov_b32", sOUT[3], "0x20000"))
    E(salu("s_lshl_b32", sM0, sWv, 12))
    E(salu("s_mov_b32", sQ2, 32768))
    g, r, cc, l15, row8, slot, t0, t1 = vT[2], vT[3], vT[4], vT[5], vT[6], vT[7], vT[8], vT[9]
    E(valu("v_lshrrev_b32", g, 4, lane))
    E(valu("v_lshrrev_b32", r, 2, lane))
    E(valu("v_and_b32", r, 3, r))
    E(valu("v_and_b32", cc, 3, lane))
    E(valu("v_and_b32", l15, 15, lane))
    E(valu("v_lshrrev_b32", row8, 3, lane))
    E(valu("v_and_b32", slot, 7, lane))
    E(valu("v_lshlrev_b32", vOa[0], 4, lane))
    E(valu("v_add_u32", vOa[1], 131072, vOa[0]))
    E(valu("v_and_b32", t0, 6, row8))
    E(valu("v_xor_b32", t0, t0, slot))
    E(valu("v_lshlrev_b32", t0, 4, t0))
    E(valu("v_lshlrev_b32", t1, 10, row8))
    E(valu("v_add_u32", t0, t0, t1))
    E(salu("s_lshl_b32", s(47), sWv, 15))
    E(valu("v_add_u32", vWd[0], s(47), t0))
    for i in range(1, 4):
        E(valu("v_add_u32", vWd[i], i * 7168, vWd[0]))
    E(valu("v_and_b32", t0, 1, g))
    E(valu("v_lshlrev_b32", t0, 1, t0))
    E(valu("v_lshrrev_b32", t1, 1, r))
    E(valu("v_add_u32", t0, t0, t1))
    E(valu("v_lshlrev_b32", t0, 1, t0))
    E(valu("v_lshrrev_b32", t1, 1, cc))
    E(valu("v_xor_b32", t0, t0, t1))
    E(valu("v_lshlrev_b32", t0, 4, t0))
    E(valu("v_and_b32", t1, 1, cc))
    E(valu("v_lshlrev_b32", t1, 3, t1))
    E(valu("v_add_u32", t0, t0, t1))
    E(valu("v_lshlrev_b32", t1, 9, g))
    E(valu("v_add_u32", t0, t0, t1))
    E(valu("v_lshlrev_b32", t1, 7, r))
    E(valu("v_add_u32", vWr[0], t0, t1))
    for nt in range(1, 4):
        E(valu("v_xor_b32", vWr[nt], nt << 5, vWr[0]))
    E(salu("s_lshl_b32", s(47), sWv, 16))
    E(valu("v_lshlrev_b32", t0, 11, l15))
    E(valu("v_lshlrev_b32", t1, 3, g))
    E(valu("v_add_u32", t0, t0, t1))
    E(valu("v_add_u32", vSt, s(47), t0))
    E(salu("s_mov_b32", sCo, 0))
    E(salu("s_mov_b32", sCw, 0))

    def loads(c_rel, envc):
        b = c_rel & 3
        L = []
        L.append(salu("s_add_u32", "m0", sM0, b * 16384))
        tagw = lambda env, cr=c_rel: ("W", envc(env) + cr)
        for i in range(4):
            L.append(dma(vWd[i], sWO, sCw, imm=i * 1024, nt=nt_w, tag=tagw))
        L.append(salu("s_add_u32", sCw, sCw, 131072))
        tago = lambda env, cr=c_rel: ("O", envc(env) + cr)
        for st in range(4):
            for qt in range(2):
                L.append(vload(vOb(b, qt, st), vOa[qt], sO, sCo, imm=st * 1024, nt=nt_o, tag=tago))
        L.append(salu("s_add_u32", sCo, sCo, 4096))
        return L

    def wreads(c_rel, nt, buf):
        b = c_rel & 3
        L = []
        for st in range(4):
            for u in range(2):
                L.append(ds_tr(vWf(buf, st).sub(2 * u, 2), vWr[nt], b * 16384 + st * 4096 + u * 2048))
        return L

    envc0 = lambda env: 0
    for c in range(3):
        for x in loads(c, envc0):
            E(x)
    for k in range(32):
        E(valu("v_mov_b32", v(k), 0))
    E(barrier(need=lambda env: [("W", 0)]))
    for x in wreads(0, 0, 0):
        E(x)

    def chunk_iter(envc, last=False):
        L = []
        gap = 0
        for c in range(4):
            ld = loads(c + 3, envc) if (not last or c == 0) else []
            ldpos = {}
            pos = 1
            for x in ld:
                ldpos.setdefault(pos, []).append(x)
                if x.kind != "salu":
                    pos += 2
            for nt in range(4):
                G = c * 4 + nt
                buf = G & 1
                base = gap
                bar = None
                final = last and c == 3
                if nt == 3 and not final:
                    bar = barrier(need=lambda env, c=c: [("W", envc(env) + c + 1)])
                    bar.pin = base - 1
                    L.append(bar)
                if nt < 3:
                    nx = wreads(c, nt + 1, buf ^ 1)
                elif not final:
                    nx = wreads(c + 1, 0, buf ^ 1)
                else:
                    nx = []
                mf = []
                for qt in range(2):
                    for st in range(4):
                        mf.append(mfma(vAcc(qt, nt), vWf(buf, st), vOb(c & 3, qt, st), vAcc(qt, nt)))
                w = waitlg(*[vWf(buf, st) for st in range(4)])
                w.pin = base - 1
                L.append(w)
                if nt == 0:
                    wo = waitvm(lambda env, c=c: [("O", envc(env) + c)])
                    wo.pin = base - 1
                    L.append(wo)
                for k, x in enumerate(nx):
                    x.pin = base + k // 2
                    if bar is not None:
                        x.after.append(bar)
                for k in range(8):
                    L.append(mf[k])
                    for x in nx:
                        if x.pin == base + k:
                            L.append(x)
                    for x in ldpos.get(nt * 8 + k, []):
                        x.pin = base + k
                        L.append(x)
                gap += 8
        return L

    loop_l = chunk_iter(lambda env: env["it"] * 4)
    loop = [label("K2_LOOP")] + schedule(loop_l, verbose="k2 loop")
    loop.append(salu("s_sub_u32", sCnt, sCnt, 1))
    loop.append(salu("s_cmp_lg_u32", sCnt, 0))
    loop.append(raw("s_cbranch_scc1 K2_LOOP", "branch", rd=["scc"]))
    pro.append(salu("s_mov_b32", sCnt, 7))
    last = schedule(chunk_iter(lambda env: 28, last=True), verbose="k2 last")
    epi = []
    for qt in range(2):
        for nt in range(4):
            A = vAcc(qt, nt)
            T = v(32 + (qt * 4 + nt) * 2, 2)
            epi.append(valu("v_cvt_pk_bf16_f32", T[0], A[0], A[1]))
            epi.append(valu("v_cvt_pk_bf16_f32", T[1], A[2], A[3]))
            epi.append(vstore(T, vSt, sOUT, (sQ2 if qt else 0), imm=nt * 32))
    end = [label("K2_END"), raw("s_endpgm", "end")]
    trace = [(pro, {})] + [(loop, {"it": i}) for i in range(7)] + [(last, {}), (epi, {}), (end, {})]
    finalize([trace])
    assert check_hazards([trace]) == 0
    txt = "\n".join(emit_text(x) for x in (pro, loop, last, epi, end))
    for nm, sg in (("pro", pro), ("loop", loop), ("last", last), ("epi", epi)):
        print("  k2", nm, seg_stats(sg))
    return txt, dict(vgpr=256, agpr=0, lds=65536, grid=240)
```

```python
import sys, os, re
sys.path.insert(0, os.path.dirname(os.path.abspath(__file__)))
from asmlib import *
import k1common as C
import k2

NAME = "concat_heads__mha_block_cached__mha_block_cached__near_ridge"
REF = f"cdna_kernels/{NAME}.s.ref"


def kd(name, vgpr, agpr):
    acc = (vgpr + 3) // 4 * 4
    return f""".section .rodata,"a"
.p2align 6
.amdhsa_kernel {name}
  .amdhsa_next_free_vgpr {acc + agpr if agpr else vgpr}
  .amdhsa_next_free_sgpr 102
  .amdhsa_accum_offset {acc}
  .amdhsa_group_segment_fixed_size 0
  .amdhsa_kernarg_size 104
  .amdhsa_user_sgpr_count 2
  .amdhsa_user_sgpr_kernarg_segment_ptr 1
  .amdhsa_system_sgpr_workgroup_id_x 1
.end_amdhsa_kernel
"""


def build(opt):
    hdr = []
    for line in open(REF):
        if line.startswith("; @launch"):
            break
        if line.startswith(";") and "Override launch" not in line and "grid=ceil" not in line:
            hdr.append(line.rstrip("\n"))
    if opt.get("slow_only"):
        pro = []
        C.setup(pro.append)
        pro.append(raw("s_branch K1_SLOW", "branch"))
        segs, traces = C.slow_path()
        end = [label("K1_END"), raw("s_endpgm", "end")]
        traces = [[(pro, {})] + t for t in traces]
        finalize(traces)
        assert check_hazards(traces) == 0
        k1txt = "\n".join(emit_text(x) for x in [pro] + segs + [end])
    else:
        import k1fast
        k1txt = k1fast.build(opt)
    k2txt, k2i = k2.build(opt)
    k1name = NAME + "_kernel"
    out = "\n".join(hdr) + "\n"
    out += f"; @launch kernel={k1name} grid=(256,1,1) block=(256,1,1) lds={C.LDS_BYTES}\n"
    out += f"; @launch kernel={k2.NAME} grid=({k2i['grid']},1,1) block=(256,1,1) lds={k2i['lds']}\n"
    out += '.amdgcn_target "amdgcn-amd-amdhsa--gfx950"\n.text\n'
    for nm, txt in ((k1name, k1txt), (k2.NAME, k2txt)):
        out += f".globl {nm}\n.p2align 8\n.type {nm},@function\n{nm}:\n{txt}\n"
    out += kd(k1name, 256, 256)
    out += kd(k2.NAME, k2i["vgpr"], k2i["agpr"])
    return out


if __name__ == "__main__":
    opt = {}
    outp = f"cdna_kernels/{NAME}.s"
    for a_ in sys.argv[1:]:
        if a_.startswith("-o"):
            outp = a_[2:]
        elif "=" in a_:
            k, v_ = a_.split("=")
            opt[k] = int(v_) if re.fullmatch(r"-?\d+", v_) else v_
        else:
            opt[a_] = True
    txt = build(opt)
    open(outp, "w").write(txt)
    print("wrote", outp, len(txt), "bytes")
```

```python
from collections import defaultdict


class Reg:
    __slots__ = ("c", "i", "n")

    def __init__(s, c, i, n=1):
        s.c, s.i, s.n = c, i, n

    def __str__(s):
        if s.n == 1:
            return f"{s.c}{s.i}"
        return f"{s.c}[{s.i}:{s.i + s.n - 1}]"

    __repr__ = __str__

    def regs(s):
        return [f"{s.c}{k}" for k in range(s.i, s.i + s.n)]

    def __getitem__(s, k):
        assert 0 <= k < s.n
        return Reg(s.c, s.i + k, 1)

    def sub(s, k, n):
        assert 0 <= k and k + n <= s.n
        return Reg(s.c, s.i + k, n)


def v(i, n=1):
    assert 0 <= i and i + n <= 256, (i, n)
    return Reg("v", i, n)


def a(i, n=1):
    assert 0 <= i and i + n <= 256, (i, n)
    return Reg("a", i, n)


def s(i, n=1):
    assert 0 <= i and i + n <= 102, (i, n)
    return Reg("s", i, n)


def regs_of(x):
    if isinstance(x, Reg):
        return x.regs()
    if isinstance(x, str):
        if x in ("m0", "exec", "scc"):
            return [x]
        if x == "vcc":
            return ["vcc"]
        return []
    return []


class Ins:
    __slots__ = ("txt", "kind", "rd", "wr", "cost", "pin", "lo", "after", "tag", "need",
                 "lgkm0", "w_vm", "w_lg", "nop", "first", "stream", "idx", "srcC", "comment", "force_keep")

    def __init__(s, txt, kind, rd=(), wr=(), cost=4, pin=None, lo=None, tag=None, need=None,
                 lgkm0=False, first=False, srcC=()):
        s.txt, s.kind = txt, kind
        s.rd, s.wr = list(rd), list(wr)
        s.cost = cost
        s.pin = pin
        s.lo = lo
        s.after = []
        s.tag = tag
        s.need = need
        s.lgkm0 = lgkm0
        s.w_vm = None
        s.w_lg = None
        s.nop = 0
        s.first = first
        s.stream = None
        s.srcC = list(srcC)
        s.comment = None
        s.force_keep = False

    def __repr__(s):
        return f"<{s.kind}:{s.txt}>"


def _flat(xs):
    out = []
    for x in xs:
        out += regs_of(x)
    return out


def mfma(D, A, B, C):
    ctxt = str(C)
    rd = _flat([A, B]) + (regs_of(C) if isinstance(C, Reg) else [])
    return Ins(f"v_mfma_f32_16x16x32_bf16 {D}, {A}, {B}, {ctxt}", "mfma", rd, D.regs(), cost=8,
               srcC=(regs_of(C) if isinstance(C, Reg) else []))


TRANS = ("v_exp_f32", "v_rcp_f32", "v_log_f32", "v_rsq_f32", "v_sqrt_f32")


def valu(op, dst, *src, extra_rd=(), extra_wr=(), suffix=""):
    kind = "trans" if op in TRANS else "valu"
    txt = f"{op} {dst}, " + ", ".join(str(x) for x in src) + suffix
    rd = _flat(src) + list(extra_rd)
    wr = _flat([dst]) + list(extra_wr)
    if op.startswith("v_cndmask") and "vcc" not in rd and not any(isinstance(x, Reg) and x.c == "s" and x.n == 2 for x in src):
        rd.append("vcc")
    if op in ("v_swap_b32",) or op.startswith("v_permlane"):
        rd = _flat([dst]) + _flat(src)
        wr = _flat([dst]) + _flat(src)
    if op in ("v_fmac_f32",):
        rd += _flat([dst])
    i = Ins(txt, kind, rd + ["exec"], wr, cost=8 if kind == "trans" else 4)
    return i


def vcmp(op, dst, x, y):
    return Ins(f"{op} {dst}, {x}, {y}", "valu", _flat([x, y]) + ["exec"], _flat([dst]), cost=4)


def salu(op, dst, *src, scc_wr=False, scc_rd=False):
    txt = f"{op} {dst}" + "".join(f", {x}" for x in src)
    rd = _flat(src)
    wr = _flat([dst])
    if op.startswith("s_cmp"):
        rd = _flat([dst]) + rd
        wr = ["scc"]
    elif scc_wr:
        wr.append("scc")
    if scc_rd or op.startswith("s_cselect") or op.startswith("s_addc") or op.startswith("s_subb"):
        rd.append("scc")
    return Ins(txt, "salu", rd, wr, cost=4)


def atomic(*inss):
    rd, wr = [], []
    for x in inss:
        rd += [r for r in x.rd if r not in wr and r != "scc"]
        wr += [r for r in x.wr if r != "scc"]
    return Ins("\n    ".join(x.txt for x in inss), "salu", rd, wr, cost=4 * len(inss))


def ds_read(op, dst, addr, off=0, **kw):
    assert 0 <= off < 65536, off
    o = f" offset:{off}" if off else ""
    return Ins(f"{op} {dst}, {addr}{o}", "ds_rd", addr.regs() + ["exec"], dst.regs(), cost=4, first=True, **kw)


def ds_b128(dst, addr, off=0, **kw):
    return ds_read("ds_read_b128", dst, addr, off, **kw)


def ds_tr(dst, addr, off=0, **kw):
    return ds_read("ds_read_b64_tr_b16", dst, addr, off, **kw)


def ds_write(op, addr, data, off=0):
    o = f" offset:{off}" if off else ""
    return Ins(f"{op} {addr}, {data}{o}", "ds_wr", addr.regs() + data.regs() + ["exec"], [], cost=4)


def dma(voff, srd, soff, imm=0, nt=False, tag=None):
    assert 0 <= imm < 4096
    o = f" offset:{imm}" if imm else ""
    n = " nt" if nt else ""
    return Ins(f"buffer_load_dwordx4 {voff}, {srd}, {soff} offen{o}{n} lds", "dma",
               voff.regs() + srd.regs() + regs_of(soff) + ["m0", "exec"], [], cost=4, tag=tag)


def vload(dst, voff, srd, soff, imm=0, nt=False, tag=None, op=None):
    assert 0 <= imm < 4096
    op = op or {1: "buffer_load_dword", 2: "buffer_load_dwordx2", 4: "buffer_load_dwordx4"}[dst.n]
    o = f" offset:{imm}" if imm else ""
    n = " nt" if nt else ""
    return Ins(f"{op} {dst}, {voff}, {srd}, {soff} offen{o}{n}", "vld",
               voff.regs() + srd.regs() + regs_of(soff) + ["exec"], dst.regs(), cost=4, tag=tag)


def vstore(data, voff, srd, soff, imm=0, nt=False, tag=None, mods=""):
    assert 0 <= imm < 4096
    op = {1: "buffer_store_dword", 2: "buffer_store_dwordx2", 4: "buffer_store_dwordx4"}[data.n]
    o = f" offset:{imm}" if imm else ""
    n = " nt" if nt else ""
    return Ins(f"{op} {data}, {voff}, {srd}, {soff} offen{o}{n}{mods}", "vst",
               voff.regs() + srd.regs() + regs_of(soff) + data.regs() + ["exec"], [], cost=4, tag=tag)


def waitvm(need):
    return Ins("", "waitvm", cost=4, need=need)


def waitlg(*rs):
    return Ins("", "waitlg", _flat(rs), [], cost=4)


def barrier(need=None, lgkm0=True):
    return Ins("s_barrier", "barrier", cost=4, need=need, lgkm0=lgkm0)


def raw(txt, kind="salu", rd=(), wr=(), cost=4):
    return Ins(txt, kind, _flat(rd), _flat(wr), cost=cost)


def label(name):
    return Ins(f"{name}:", "label", cost=0)


def sload(dst, base, off):
    return Ins(f"s_load_dword{'x%d' % dst.n if dst.n > 1 else ''} {dst}, {base}, {off}", "smem",
               base.regs(), dst.regs(), cost=4)


def build_deps(logical):
    idx = {id(x): k for k, x in enumerate(logical)}
    lastw = {}
    readers = defaultdict(list)
    preds = [set() for _ in logical]
    for k, ins in enumerate(logical):
        for r in ins.rd:
            if r in lastw:
                preds[k].add(lastw[r])
        for r in ins.wr:
            if r in lastw:
                preds[k].add(lastw[r])
            for q in readers[r]:
                if q != k:
                    preds[k].add(q)
        for r in ins.rd:
            readers[r].append(k)
        for r in ins.wr:
            lastw[r] = k
            readers[r] = []
        for p in ins.after:
            assert id(p) in idx, ("explicit dep outside region", ins, p)
            preds[k].add(idx[id(p)])
    return preds


class HazState:
    def __init__(s):
        s.n = 0
        s.mf_w = {}
        s.mf_c = {}
        s.va_w = {}
        s.tr_w = {}
        s.va_sw = {}
        s.m0_w = -100
        s.exec_w = -100
        s.st_d = {}
        s.mf_D = {}

    def required(s, ins):
        need = 0

        def req(pos, dist):
            nonlocal need
            if pos is None:
                return
            d = s.n - pos - 1
            if d < dist:
                need = max(need, dist - d)

        k = ins.kind
        if k == "mfma":
            C = tuple(ins.srcC)
            for r in ins.rd:
                if r in s.va_w:
                    req(s.va_w[r], 2)
                if r in s.mf_w:
                    if r in C and s.mf_D.get(r) == C:
                        if r in ins.rd[:len(ins.rd) - len(C)]:
                            req(s.mf_w[r], 8)
                    elif r in C:
                        req(s.mf_w[r], 6)
                    else:
                        req(s.mf_w[r], 8)
            req(s.exec_w, 4)
        elif k in ("valu", "trans"):
            for r in ins.rd:
                if r in s.mf_w:
                    req(s.mf_w[r], 8)
                if r in s.tr_w and k == "valu":
                    req(s.tr_w[r], 1)
                if r in s.tr_w and k == "trans":
                    req(s.tr_w[r], 1)
                if r in s.va_sw:
                    req(s.va_sw[r], 2)
                if ins.txt.startswith("v_permlane") or "dpp" in ins.txt or "row_" in ins.txt:
                    if r in s.va_w:
                        req(s.va_w[r], 2)
                if ins.txt.startswith("v_readfirstlane") or ins.txt.startswith("v_readlane"):
                    if r in s.va_w:
                        req(s.va_w[r], 1)
            for r in ins.wr:
                if r in s.mf_w:
                    req(s.mf_w[r], 8)
                if r in s.mf_c:
                    req(s.mf_c[r], 3)
                if r in s.st_d:
                    req(s.st_d[r], 2)
        elif k in ("ds_rd", "ds_wr", "dma", "vld", "vst"):
            for r in ins.rd:
                if r in s.mf_w:
                    req(s.mf_w[r], 8)
                if r in s.va_sw and k in ("dma", "vld", "vst"):
                    req(s.va_sw[r], 5)
            for r in ins.wr:
                if r in s.mf_w:
                    req(s.mf_w[r], 8)
                if r in s.st_d:
                    req(s.st_d[r], 1)
            if k == "dma":
                req(s.m0_w, 1)
        elif k == "salu":
            for r in ins.rd:
                if r in s.va_sw:
                    req(s.va_sw[r], 1)
        return need

    def issue(s, ins, nops=0):
        s.n += nops
        k = ins.kind
        if k == "label":
            return
        if k == "mfma":
            D = tuple(ins.wr)
            for r in ins.wr:
                s.mf_w[r] = s.n
                s.mf_D[r] = D
                s.va_w.pop(r, None)
            for r in ins.srcC:
                s.mf_c[r] = s.n
        elif k in ("valu", "trans"):
            for r in ins.wr:
                if r.startswith("s") or r == "vcc":
                    s.va_sw[r] = s.n
                elif r == "exec":
                    s.exec_w = s.n
                else:
                    s.va_w[r] = s.n
                    s.mf_w.pop(r, None)
                    if k == "trans":
                        s.tr_w[r] = s.n
                    else:
                        s.tr_w.pop(r, None)
        elif k == "salu":
            for r in ins.wr:
                if r == "m0":
                    s.m0_w = s.n
                s.va_sw.pop(r, None)
        elif k == "vst":
            if len([r for r in ins.rd if r[0] in "va"]) >= 4:
                for r in ins.rd:
                    if r[0] in "va":
                        s.st_d[r] = s.n
        elif k in ("ds_rd", "vld"):
            for r in ins.wr:
                s.mf_w.pop(r, None)
                s.va_w.pop(r, None)
                s.tr_w.pop(r, None)
        s.n += 1


def schedule(logical, budget=8, streams=None, window=40, verbose=None, haz=None):
    preds = build_deps(logical)
    n = len(logical)
    done = [False] * n
    out = []
    mf = [k for k, x in enumerate(logical) if x.kind == "mfma"]
    pinned = defaultdict(list)
    floating = []
    for k, x in enumerate(logical):
        if x.kind == "mfma":
            continue
        if x.pin is not None:
            pinned[x.pin].append(k)
        else:
            floating.append(k)
    hz = haz or HazState()
    streams = streams or {}
    tot = defaultdict(int)
    for k in floating:
        tot[logical[k].stream] += logical[k].cost
    emitted = defaultdict(int)
    stats = dict(forced=0, over=0)

    def emit(k):
        ins = logical[k]
        assert not done[k]
        nn = hz.required(ins)
        hz.issue(ins, nn)
        done[k] = True
        out.append(ins)
        if ins.kind != "mfma" and ins.pin is None:
            emitted[ins.stream] += ins.cost

    def force(k, depth=0):
        for p in sorted(preds[k]):
            if not done[p]:
                if logical[p].kind == "mfma":
                    raise RuntimeError(f"forced pred is a later MFMA: {logical[k]} needs {logical[p]}")
                force(p, depth + 1)
                stats["forced"] += logical[p].cost
                emit(p)

    def ready(k):
        return all(done[p] for p in preds[k])

    fl_ptr = 0

    def pick(g, room, lagging_only=None):
        nonlocal fl_ptr
        while fl_ptr < len(floating) and done[floating[fl_ptr]]:
            fl_ptr += 1
        cnt = 0
        best = None
        j = fl_ptr
        while j < len(floating) and cnt < window:
            k = floating[j]
            j += 1
            if done[k]:
                continue
            cnt += 1
            x = logical[k]
            if x.lo is not None and x.lo > g:
                continue
            if lagging_only is not None and x.stream != lagging_only:
                continue
            if x.cost > room:
                continue
            if not ready(k):
                continue
            if hz.required(x) > 0:
                continue
            if room >= 8 and x.cost == 8:
                return k
            if best is None:
                best = k
                if room < 8:
                    return k
        return best

    def fill(g):
        used = 0
        pk = pinned.get(g, [])
        pk = [k for k in pk if logical[k].first] + [k for k in pk if not logical[k].first]
        for k in pk:
            if done[k]:
                continue
            force(k)
            emit(k)
            used += logical[k].cost
        if g < 0:
            return
        while used < budget:
            k = pick(g, budget - used)
            if k is None:
                break
            emit(k)
            used += logical[k].cost
        for name, (g0, g1) in streams.items():
            if g < g0:
                continue
            tgt = tot[name] * min(1.0, (g - g0 + 1) / (g1 - g0 + 1))
            while emitted[name] + 2 < tgt:
                k = pick(g, 8, lagging_only=name)
                if k is None:
                    break
                emit(k)
                used += logical[k].cost
        if used > budget:
            stats["over"] += used - budget

    fill(-1)
    for g, k in enumerate(mf):
        force(k)
        emit(k)
        fill(g)
    left = 0
    for k in range(n):
        if not done[k]:
            force(k)
            left += logical[k].cost
            emit(k)
    stats["left"] = left
    stats["nmf"] = len(mf)
    if verbose:
        tc = sum(x.cost for x in logical)
        print(f"  [sched {verbose}] mfma={len(mf)} instr={n} issue={tc} forced={stats['forced']} over={stats['over']} left={left}")
    pos = {id(x): i for i, x in enumerate(out)}
    for k in range(n):
        for p in preds[k]:
            assert pos[id(logical[p])] < pos[id(logical[k])]
    return out


def finalize(traces, name=""):
    for trace in traces:
        vmq = []
        lgq = []
        vm_count = 0
        for seg, env in trace:
            for ins in seg:
                k = ins.kind
                if k == "label":
                    continue
                touched = set(ins.rd) | set(ins.wr)
                wl = None
                if ins.lgkm0 and lgq:
                    wl = 0
                smem_hit = False
                for j, (rs, kd) in enumerate(lgq):
                    if rs & touched:
                        if kd == "smem":
                            smem_hit = True
                        c = len(lgq) - 1 - j
                        wl = c if wl is None else min(wl, c)
                if wl is not None and (smem_hit or any(kd == "smem" for _, kd in lgq)):
                    wl = 0
                if wl is not None:
                    wl = min(wl, 15)
                    ins.w_lg = wl if ins.w_lg is None else min(ins.w_lg, wl)
                wv = None
                for j, (tag, rs) in enumerate(vmq):
                    hit = bool(rs & touched)
                    if hit:
                        c = len(vmq) - 1 - j
                        wv = c if wv is None else min(wv, c)
                if ins.need is not None:
                    nd = ins.need(env)
                    if nd == "all":
                        if vmq:
                            wv = 0
                    else:
                        nd = set(nd)
                        for j, (tag, rs) in enumerate(vmq):
                            if tag in nd:
                                c = len(vmq) - 1 - j
                                wv = c if wv is None else min(wv, c)
                if wv is not None and wv <= 63:
                    ins.w_vm = wv if ins.w_vm is None else min(ins.w_vm, wv)
                if wl is not None:
                    lgq[:] = lgq[len(lgq) - wl:] if wl > 0 else []
                if wv is not None and wv <= 63:
                    vmq[:] = vmq[len(vmq) - wv:] if wv > 0 else []
                if k in ("ds_rd",):
                    lgq.append((set(ins.wr), k))
                elif k == "ds_wr":
                    lgq.append((set(), k))
                elif k == "smem":
                    lgq.append((set(ins.wr), k))
                elif k in ("dma", "vld", "vst"):
                    vmq.append((ins.tag(env) if ins.tag else None, set(ins.wr)))
                    if len(vmq) > 63:
                        vmq[:] = vmq[-63:]
    for trace in traces:
        hz = HazState()
        for seg, env in trace:
            for ins in seg:
                if ins.kind == "label":
                    continue
                has_wait = (ins.w_vm is not None) or (ins.w_lg is not None)
                if ins.kind in ("waitvm", "waitlg"):
                    continue
                if has_wait:
                    hz.n += 1
                base = ins.nop
                hz.n += base
                need = hz.required(ins)
                if need > 0:
                    ins.nop = base + need
                    hz.n += need
                hz.issue(ins)


def check_hazards(traces):
    bad = 0
    for trace in traces:
        hz = HazState()
        for seg, env in trace:
            for ins in seg:
                if ins.kind == "label":
                    continue
                has_wait = (ins.w_vm is not None) or (ins.w_lg is not None)
                if ins.kind in ("waitvm", "waitlg"):
                    continue
                if has_wait:
                    hz.n += 1
                hz.n += ins.nop
                if hz.required(ins) > 0:
                    bad += 1
                    print("HAZARD left:", ins)
                hz.issue(ins)
    return bad


def emit_text(seg):
    lines = []
    pv = pl = None

    def flush():
        nonlocal pv, pl
        w = []
        if pv is not None:
            w.append(f"vmcnt({pv})")
        if pl is not None:
            w.append(f"lgkmcnt({pl})")
        if w:
            lines.append("    s_waitcnt " + " ".join(w))
        pv = pl = None

    for ins in seg:
        if ins.kind == "label":
            flush()
            lines.append(ins.txt)
            continue
        if ins.w_vm is not None:
            pv = ins.w_vm if pv is None else min(pv, ins.w_vm)
        if ins.w_lg is not None:
            pl = ins.w_lg if pl is None else min(pl, ins.w_lg)
        if ins.kind in ("waitvm", "waitlg"):
            continue
        flush()
        nn = ins.nop
        while nn > 0:
            c = min(nn, 8)
            lines.append(f"    s_nop {c - 1}")
            nn -= c
        lines.append("    " + ins.txt + (f"    ; {ins.comment}" if ins.comment else ""))
    flush()
    return "\n".join(lines)


def seg_stats(seg):
    c = defaultdict(int)
    for ins in seg:
        c[ins.kind] += 1
        if ins.w_vm is not None or ins.w_lg is not None:
            c["WAIT"] += 1
        if ins.nop:
            c["NOP"] += 1
            c["NOPSTATES"] += ins.nop
    return dict(c)


def est_cycles(seg, marks=None):
    t = 0
    free = 0
    n = 0
    idle_issue = 0
    res = {}
    pend = False
    for ins in seg:
        if ins.kind == "label":
            continue
        if ins.w_vm is not None or ins.w_lg is not None:
            pend = True
        if ins.kind in ("waitvm", "waitlg"):
            continue
        if pend:
            t += 4
            pend = False
        t += 4 * ins.nop
        if ins.kind == "mfma":
            if marks and n in marks:
                res[n] = max(t, free)
            if free > t:
                idle_issue += free - t
                t = free
            free = t + 16
            t += 8
            n += 1
        else:
            t += ins.cost
    return max(t, free), idle_issue, res
```

```python
from asmlib import *
import k1common as C
from k1common import *

vWf = lambda b, ks: v(VP + b * 8 + ks * 4, 4)
vE8 = lambda b: v(216 + b * 8, 8)
vE4 = lambda b: v(232 + b * 4, 4)
vC4 = lambda b: v(244 + b * 4, 4)
vMisc = [v(252 + i) for i in range(4)]
vV7 = lambda dt, ks: v(VS + dt * 8 + ks * 4, 4)

HI_LIMIT = "0x53800000"


class G:
    def __init__(s):
        s.L = []
        s.n = 0

    def mf(s, ins):
        s.L.append(ins)
        s.n += 1

    def pin(s, ins, g):
        ins.pin = g
        s.L.append(ins)
        return ins

    def fl(s, ins, stream=None, lo=None):
        ins.stream = stream
        ins.lo = lo
        s.L.append(ins)
        return ins


def epilogue_stream(g, nq, stream, lo, opt, valid_check=True, tiles=None, check=True):
    add = lambda ins: g.fl(ins, stream, lo)
    for qt in range(nq):
        reduce_g(add, vL[qt], vMisc[qt & 1], "v_add_f32")
        add(valu("v_rcp_f32", vRi[qt], vL[qt]))
    if check:
        t = vMisc[2]
        add(valu("v_add_f32", t, vL[0], vRi[0]))
        for qt in range(1, nq):
            add(valu("v_add_f32", t, t, vL[qt]))
            add(valu("v_add_f32", t, t, vRi[qt]))
        add(vcmp("v_cmp_nge_f32", "vcc", HI_LIMIT, t))
        add(atomic(salu("s_cmp_lg_u64", "vcc", 0), salu("s_cselect_b32", sT[1], sValid, 0),
                   salu("s_or_b32", sBad, sBad, sT[1])))
    b = 0
    for qt in range(nq):
        for st in range(4):
            T8 = vE8(b & 1)
            T4 = vE4(b % 3)
            for h in range(2):
                for k in range(4):
                    add(valu("v_accvgpr_read_b32", T8[4 * h + k], aO(qt, 2 * st + h)[k]))
            for k in range(8):
                add(valu("v_mul_f32", T8[k], vRi[qt], T8[k]))
            for k in range(4):
                add(valu("v_cvt_pk_bf16_f32", T4[k], T8[2 * k], T8[2 * k + 1]))
            add(vstore(T4, vSt, sO, sOs[qt], imm=st * 1024, nt=opt.get("nt_ost", False),
                       tag=lambda env: ("ost",)))
            b += 1


def convert_stream(g, nq, stream, order):
    add = lambda ins: g.fl(ins, stream)
    b = 0
    for (qt, ds) in order:
        T0, T1 = vQa(qt, 2 * ds), vQa(qt, 2 * ds + 1)
        tmp = vC4(b & 1)
        for T in (T0, T1):
            for k in range(4):
                add(valu("v_mul_f32", T[k], sQs, T[k]))
        add(valu("v_cvt_pk_bf16_f32", tmp[0], T0[0], T0[1]))
        add(valu("v_cvt_pk_bf16_f32", tmp[1], T0[2], T0[3]))
        add(valu("v_cvt_pk_bf16_f32", tmp[2], T1[0], T1[1]))
        add(valu("v_cvt_pk_bf16_f32", tmp[3], T1[2], T1[3]))
        add(valu("v_cndmask_b32", T0[0], tmp[0], tmp[2], sExecOdd))
        add(valu("v_cndmask_b32", T0[1], tmp[1], tmp[3], sExecOdd))
        add(valu("v_cndmask_b32", T0[2], tmp[2], tmp[0], sExecOdd))
        add(valu("v_cndmask_b32", T0[3], tmp[3], tmp[1], sExecOdd))
        for k in range(4):
            add(valu("v_accvgpr_write_b32", aQ(qt, ds)[k], T0[k]))
        b += 1


def softmax_stream(g, i, nq, first, order, stream):
    par = i & 1
    add = lambda ins: g.fl(ins, stream)
    started = set()
    for (qt, kt) in order:
        S = vS(par, qt, kt)
        for k in range(4):
            add(valu("v_exp_f32", S[k], S[k]))
        if first and qt not in started:
            add(valu("v_add_f32", vL[qt], S[0], S[1]))
            ks_ = (2, 3)
        else:
            ks_ = (0, 1, 2, 3)
        started.add(qt)
        for k in ks_:
            add(valu("v_add_f32", vL[qt], vL[qt], S[k]))
        Pd = vP(par, qt, kt >> 1)
        add(valu("v_cvt_pk_bf16_f32", Pd[2 * (kt & 1)], S[0], S[1]))
        add(valu("v_cvt_pk_bf16_f32", Pd[2 * (kt & 1) + 1], S[2], S[3]))


def w_reads(c, dt, buf):
    half, dsp, t = dt >> 2, (dt >> 1) & 1, dt & 1
    st = c & 1
    return [ds_tr(vWf(buf, ks).sub(2 * u, 2), vWr[dsp][t], st * 32768 + half * 8192 + ks * 4096 + u * 512)
            for ks in range(2) for u in range(2)]


def x_reads(c, nq):
    st = c & 1
    return [ds_b128(aX(st, qt, ks), vXr, (32768 if st == 0 else 0) + qt * 2048 + ks * 512)
            for qt in range(nq) for ks in range(2)]


def k_reads(slot, kt, buf):
    return [ds_b128(vKf(buf, ds), vKr, slot * 16384 + kt * 4096 + ds * 256) for ds in range(4)]


def v_reads(slot, dt, dst):
    return [ds_tr(dst(ks).sub(2 * u, 2), vVr[dt & 1], slot * 16384 + (dt >> 1) * 256 + ks * 8192 + u * 4096)
            for ks in range(2) for u in range(2)]


def stage_dma(c_stage, gm, tagf, opt):
    L = [salu("s_add_u32", "m0", sM0[c_stage], gm * 4096)]
    for i in range(4):
        L.append(dma(vDm[i], sD, sSo[gm], imm=i * 1024, nt=opt.get("nt_stage", False), tag=tagf))
    L.append(salu("s_add_u32", sSo[gm], sSo[gm], sStep))
    return L


def kv_dma(which, slot, tagf, opt):
    L = []
    so = sKo if which == "K" else sVo
    srd = sK if which == "K" else sV
    base = (LK if which == "K" else LV) + slot * 16384
    for gm in range(4):
        L.append(salu("s_mov_b32", "m0", base + gm * 4096))
        for i in range(4):
            vo = vKd[i] if which == "K" else vVd[i & 1]
            L.append(dma(vo, srd, so, imm=i * 1024, nt=opt.get("nt_kv", True), tag=tagf))
        L.append(salu("s_add_u32", so, so, 4096))
    return L


def spread(g, items, g0, g1, after=None):
    nd = sum(1 for x in items if x.kind != "salu")
    pos = []
    k = 0
    span = g1 - g0
    last = g0
    for j, x in enumerate(items):
        if x.kind != "salu":
            p = g0 + 1 + (k * (span - 1)) // nd
            k += 1
            last = p
            pos.append(p)
        else:
            pos.append(None)
    for j, x in enumerate(items):
        if pos[j] is None:
            if "m0" in x.wr:
                nxt = next(pos[q] for q in range(j + 1, len(items)) if pos[q] is not None)
                prev = max([pos[q] for q in range(j) if pos[q] is not None], default=g0)
                pos[j] = max(nxt - 1, prev)
            else:
                prev = max(pos[q] for q in range(j) if pos[q] is not None)
                pos[j] = prev
    for x, p in zip(items, pos):
        if after is not None:
            x.after.append(after)
        g.pin(x, p)


def qk_group(g, i, kt, buf, nq, split_first=False):
    par = i & 1
    for qt in range(nq):
        for ds in range(4):
            g.mf(mfma(vS(par, qt, kt), vKf(buf, ds), aQ(qt, ds), vS(par, qt, kt) if ds else 0))


def pv_group(g, i, dts, frag, nq, init):
    par = i & 1
    for dt in dts:
        for qt in range(nq):
            for ks in range(2):
                g.mf(mfma(aO(qt, dt), frag(dt, ks), vP(par, qt, ks), aO(qt, dt) if (ks or not init) else 0))


def pin_reads(g, reads, base, step=1, after=None, span=None):
    for k, x in enumerate(reads):
        if after is not None:
            x.after.append(after)
        g.pin(x, base + (k * step if span is None else (k * span) // len(reads)))


def build_variant(role, opt):
    A = role == "A"
    nq = 4 if A else 3
    P = role + "_"
    hd = lambda env: env["hd"]
    segs = {}

    ini = [label(f"K1_{role}")]
    E = ini.append
    E(salu("s_mov_b32", sHd, 0))
    E(salu("s_mov_b32", sValid, 0))
    E(salu("s_mov_b32", sO[2], 0))
    for qt in range(4):
        E(salu("s_mov_b32", sOs[qt], qt * 131072))
    if A:
        for gm in range(4):
            E(salu("s_mov_b32", sSo[gm], sSoB[gm]))
        for c in range(2):
            for gm in range(4):
                for x in stage_dma(c, gm, lambda env, c=c: ("st", 0, c), opt):
                    E(x)
    else:
        E(salu("s_mov_b32", sKo, 0))
        E(salu("s_mov_b32", sVo, 0))
        for (w, n) in (("K", 0), ("K", 1), ("V", 0), ("K", 2)):
            for x in kv_dma(w, n & 3, lambda env, w=w, n=n: (w, n), opt):
                E(x)
    for qt in range(nq):
        E(valu("v_mov_b32", vL[qt], 1.0))
    E(barrier(need=(lambda env: [("st", 0, 0)]) if A else None))
    for x in x_reads(0, nq) + w_reads(0, 0, 0) + w_reads(0, 1, 1):
        E(x)
    segs["ini"] = ini

    g = G()
    epi_lo = opt.get("epi_lo", 0)
    epilogue_stream(g, nq, "epi", epi_lo, opt)
    g.fl(salu("s_lshl_b32", sT[0], sHd, 12), "epi")
    for qt in range(nq):
        g.fl(salu("s_add_u32", sOs[qt], sT[0], qt * 131072), "epi")
    g.fl(salu("s_mov_b32", sO[2], sOsz), "epi")
    g.fl(salu("s_mov_b32", sValid, 1), "epi")

    gs = nq * 2
    seq = [(c, dt) for c in range(8) for dt in range(8)]
    NG = len(seq)
    Abar, Bbar = {}, {}
    lastbar = None
    for G_, (c, dt) in enumerate(seq):
        base = g.n
        bar = None
        if dt == 2:
            bar = barrier(need=None)
            Abar[c] = bar
            g.pin(bar, base - 1)
        if dt == 6:
            if A:
                need = (lambda env, c=c: [("st", env["hd"], c + 1)]) if c < 7 else None
            else:
                need = (lambda env: [("K", 8 * env["hd"]), ("K", 8 * env["hd"] + 1)]) if c == 7 else None
            bar = barrier(need=need)
            Bbar[c] = bar
            g.pin(bar, base - 1)
        if bar is not None:
            lastbar = bar
        g.pin(waitlg(*[vWf(G_ % 3, ks) for ks in range(2)],
                     *([aX(c & 1, qt, ks) for qt in range(nq) for ks in range(2)] if dt == 0 else [])), base - 1)
        if G_ + 2 < NG:
            c2, dt2 = seq[G_ + 2]
            pin_reads(g, w_reads(c2, dt2, (G_ + 2) % 3), base, after=lastbar)
        if dt == 6 and c < 7:
            pin_reads(g, x_reads(c + 1, nq), base, after=lastbar)
        if G_ == NG - 2:
            pin_reads(g, k_reads(0, 0, 0), base, after=lastbar)
        for qt in range(nq):
            for ks in range(2):
                first = (c == 0 and ks == 0)
                g.mf(mfma(vQa(qt, dt), vWf(G_ % 3, ks), aX(c & 1, qt, ks), 0 if first else vQa(qt, dt)))
        if A and c + 2 < 8:
            if dt == 2:
                items = []
                for gm in (0, 1):
                    items += stage_dma(c & 1, gm, lambda env, c=c: ("st", env["hd"], c + 2), opt)
                spread(g, items, base, base + 4 * gs, after=Abar[c])
            if dt == 6:
                items = []
                for gm in (2, 3):
                    items += stage_dma(c & 1, gm, lambda env, c=c: ("st", env["hd"], c + 2), opt)
                spread(g, items, base, base + 4 * gs, after=Bbar[c])
    q_end = g.n
    if not A:
        b7 = Bbar[7]
        items = kv_dma("K", 3, lambda env: ("K", 8 * env["hd"] + 3), opt) + \
                kv_dma("V", 1, lambda env: ("V", 8 * env["hd"] + 1), opt)
        spread(g, items, b7.pin + 1, b7.pin + 1 + 5 * 12, after=b7)
    corder = [(qt, ds) for ds in range(4) for qt in range(nq)]
    convert_stream(g, nq, "cv", corder)

    korder = [(qt, kt) for kt in range(4) for qt in range(nq)]
    gq = nq * 4
    buf = 0
    barI = {}
    for i in (0, 1):
        for kt in range(4):
            base = g.n
            bar = None
            if i == 1 and kt == 3:
                bar = barrier(need=None if A else (lambda env: [("K", 8 * env["hd"] + 2), ("V", 8 * env["hd"])]))
                barI[0] = bar
                g.pin(bar, base - 1)
            g.pin(waitlg(*[vKf(buf, ds) for ds in range(4)]), base - 1)
            if kt < 3:
                nx = k_reads(i, kt + 1, buf ^ 1)
            elif i == 0:
                nx = k_reads(1, 0, buf ^ 1)
            else:
                nx = k_reads(2, 0, buf ^ 1)
            pin_reads(g, nx, base, step=2, after=bar)
            qk_group(g, i, kt, buf, nq)
            buf ^= 1
            if bar is not None and not A:
                items = kv_dma("K", 0, lambda env: ("K", 8 * env["hd"] + 4), opt) + \
                        kv_dma("V", 2, lambda env: ("V", 8 * env["hd"] + 2), opt) + \
                        kv_dma("V", 3, lambda env: ("V", 8 * env["hd"] + 3), opt)
                spread(g, items, base, base + 8 * gq - 4, after=bar)
        if i == 0:
            softmax_stream(g, 0, nq, True, korder, "sm0")
    assert buf == 0
    for i in range(1, 7):
        softmax_stream(g, i, nq, False, korder, f"sm{i}")
        for n in range(8):
            base = g.n
            bar = None
            if n == 7:
                if A:
                    need = None
                else:
                    need = lambda env, i=i: [("K", 8 * env["hd"] + i + 2), ("V", 8 * env["hd"] + i)] if i < 6 else [("V", 8 * env["hd"] + 6)]
                bar = barrier(need=need)
                barI[i] = bar
                g.pin(bar, base - 1)
            if n % 2 == 0:
                kt = n // 2
                g.pin(waitlg(*[vKf(0, ds) for ds in range(4)]), base - 1)
                nx = []
                for j, dt in enumerate((n, n + 1)):
                    nx += v_reads((i - 1) & 3, dt, lambda ks, j=j: vKf(1, 2 * j + ks))
                pin_reads(g, nx, base, span=(8 if A else 5))
                qk_group(g, i + 1, kt, 0, nq)
            else:
                g.pin(waitlg(*[vKf(1, ds) for ds in range(4)]), base - 1)
                if n < 7:
                    nx = k_reads((i + 1) & 3, (n + 1) // 2, 0)
                    pin_reads(g, nx, base, step=2)
                elif i < 6:
                    nx = k_reads((i + 2) & 3, 0, 0)
                    pin_reads(g, nx, base, step=2, after=bar)
                else:
                    nx = []
                    for j, dt in enumerate((0, 1)):
                        nx += v_reads(6 & 3, dt, lambda ks, j=j: vKf(0, 2 * j + ks))
                    pin_reads(g, nx, base, after=bar, span=(8 if A else 5))
                dt0 = n - 1
                pv_group(g, i - 1, (dt0, dt0 + 1), lambda dt, ks, dt0=dt0: vKf(1, 2 * (dt - dt0) + ks), nq, init=(i == 1))
            if bar is not None and not A:
                items = kv_dma("K", (i + 4) & 3, lambda env, i=i: ("K", 8 * env["hd"] + i + 4), opt)
                if i <= 5:
                    items += kv_dma("V", (i + 3) & 3, lambda env, i=i: ("V", 8 * env["hd"] + i + 3), opt)
                if i < 6:
                    spread(g, items, base, base + 8 * gq - 4, after=bar)
                else:
                    spread(g, items, base, base + gq, after=bar)
    main = [label(P + "MAIN")] + schedule(g.L, verbose=f"{role} main", window=opt.get("window", 48))
    segs["main"] = main

    def tail(final):
        g = G()
        qorder = [(qt, kt) for qt in range(nq) for kt in range(4)]
        softmax_stream(g, 7, nq, False, qorder, "sm7")
        gp = nq * 4
        barT = None
        if not final:
            pre = []
            pre.append(salu("s_mov_b32", sHd, 1))
            if A:
                pre.append(salu("s_cmp_lt_u32", sWv, 2))
                pre.append(salu("s_cselect_b32", sT[0], 0, 256))
                for gm in range(4):
                    pre.append(salu("s_add_u32", sSo[gm], sSoB[gm], sT[0]))
            for x in pre:
                g.pin(x, -1)
            if A:
                items = []
                for gm in range(4):
                    items += stage_dma(0, gm, lambda env: ("st", 1, 0), opt)
                spread(g, items, 0, 3 * gp)
        buf = 0
        for n in range(4):
            base = g.n
            bar = None
            if n == 1:
                bar = barrier(need=None if A else (lambda env: [("V", 8 * env["hd"] + 7)]))
                g.pin(bar, base - 1)
                bar7 = bar
            g.pin(waitlg(*[vKf(buf, ds) for ds in range(4)]), base - 1)
            nx = []
            if n < 3:
                for j, dt in enumerate((2 * n + 2, 2 * n + 3)):
                    nx += v_reads(6 & 3, dt, lambda ks, j=j, buf=buf: vKf(buf ^ 1, 2 * j + ks))
            x7 = []
            if n >= 1:
                for dt in {1: (0, 1, 2), 2: (3, 4, 5), 3: (6, 7)}[n]:
                    x7 += v_reads(7 & 3, dt, lambda ks, dt=dt: vV7(dt, ks))
                for x in x7:
                    x.after.append(bar7)
            pin_reads(g, nx + x7, base, span=(gp - 3 if n < 3 else gp - 6))
            dt0 = 2 * n
            pv_group(g, 6, (dt0, dt0 + 1), lambda dt, ks, dt0=dt0, buf=buf: vKf(buf, 2 * (dt - dt0) + ks), nq, init=False)
            buf ^= 1
        base = g.n
        if not final:
            barT = barrier(need=(lambda env: [("st", 1, 0)]) if A else None)
            g.pin(barT, base - 1)
        g.pin(waitlg(*[vV7(dt, ks) for dt in range(8) for ks in range(2)]), base - 1)
        if not final:
            if A:
                items = []
                for gm in range(4):
                    items += stage_dma(1, gm, lambda env: ("st", 1, 1), opt)
                spread(g, items, base, base + 40, after=barT)
            rd = x_reads(0, nq) + w_reads(0, 0, 0) + w_reads(0, 1, 1)
            pin_reads(g, rd, g.n + nq * 16 - len(rd) - 8, after=barT)
        for qt in range(nq):
            for dt in range(8):
                for ks in range(2):
                    g.mf(mfma(aO(qt, dt), vV7(dt, ks), vP(1, qt, ks), aO(qt, dt)))
        if final:
            epilogue_stream(g, nq, "epi", None, opt)
        out = schedule(g.L, verbose=f"{role} tail{'2' if final else '1'}", window=opt.get("window", 48))
        return out

    t1 = tail(False)
    t1.append(raw(f"s_branch {P}MAIN", "branch"))
    t2 = [label(P + "TAIL2")] + tail(True)
    E = t2.append
    E(salu("s_lshl_b32", sT[0], sWv, 2))
    E(salu("s_add_u32", sT[0], sT[0], LFLAG))
    E(valu("v_mov_b32", vMisc[0], sT[0]))
    E(valu("v_mov_b32", vMisc[1], sBad))
    E(ds_write("ds_write_b32", vMisc[0], vMisc[1]))
    E(barrier())
    E(valu("v_mov_b32", vMisc[0], LFLAG))
    E(ds_b128(v(VP, 4), vMisc[0]))
    E(valu("v_or_b32", v(VP), v(VP), v(VP + 1)))
    E(valu("v_or_b32", v(VP + 2), v(VP + 2), v(VP + 3)))
    E(valu("v_or_b32", v(VP), v(VP), v(VP + 2)))
    E(raw(f"v_readfirstlane_b32 {sT[0]}, {v(VP)}", "valu", rd=[v(VP), "exec"], wr=[sT[0]]))
    E(salu("s_cmp_lg_u32", sT[0], 0))
    E(raw("s_cbranch_scc1 K1_SLOW", "branch", rd=["scc"]))
    E(raw("s_endpgm", "end"))
    main.append(salu("s_cmp_eq_u32", sHd, 1))
    main.append(raw(f"s_cbranch_scc1 {P}TAIL2", "branch", rd=["scc"]))
    segs["t1"] = t1
    segs["t2"] = t2
    trace = [(ini, {"hd": 0}), (main, {"hd": 0}), (t1, {"hd": 0}), (main, {"hd": 1}), (t2, {"hd": 1})]
    return [ini, main, t1, t2], trace


def build(opt):
    pro = []
    setup(pro.append)
    pro.append(salu("s_cmp_eq_u32", sWv, 3))
    pro.append(raw("s_cbranch_scc1 K1_B", "branch", rd=["scc"]))
    sa, ta = build_variant("A", opt)
    sb, tb = build_variant("B", opt)
    ss, ts = slow_path()
    end = [label("K1_END"), raw("s_endpgm", "end")]
    traces = [[(pro, {})] + ta, [(pro, {})] + tb]
    if opt.get("force_slow_check"):
        pass
    traces += [[(pro, {})] + ta + t for t in ts[:1]] + [[(pro, {})] + tb + ts[1]]
    finalize(traces)
    assert check_hazards(traces) == 0
    for role, ss_, nq in (("A", sa, 4), ("B", sb, 3)):
        for nm, sg in zip(("ini", "main", "t1", "t2"), ss_):
            marks = None
            if nm == "main":
                marks = [64 * nq * 2, 64 * nq * 2 + 32 * nq] + [64 * nq * 2 + 32 * nq * (k + 1) for k in range(1, 7)]
            tot, idle, res = est_cycles(sg, marks)
            print(f"  {role} {nm}: est {tot} cyc (issue idle {idle}) marks {res}", seg_stats(sg) if opt.get("v") else "")
    return "\n".join(emit_text(x) for x in [pro] + sa + sb + ss + [end])
```
